```python
import torch

def _softmax(x, axis=-1):
    return torch.softmax(x, dim=axis)

def _gelu(x):
    return torch.nn.functional.gelu(x, approximate='tanh')

def _silu(x):
    return torch.nn.functional.silu(x)

def _sigmoid(x):
    return torch.sigmoid(x)

def _layernorm(x, axis=-1, eps=1e-05):
    m = x.mean(dim=axis, keepdim=True)
    v = x.var(dim=axis, keepdim=True, unbiased=False)
    return (x - m) / torch.sqrt(v + eps)

def _scatter_add(tgt, idx, src, axis=0):
    return tgt.clone().index_add_(axis, idx, src)

def _segment_sum(src, seg, n):
    out = torch.zeros((n,) + src.shape[1:], dtype=src.dtype)
    return out.index_add_(0, seg, src)

def _pad(x, pw):
    flat = tuple((v for pair in reversed(pw) for v in pair))
    return torch.nn.functional.pad(x, flat)
kernel_name = 'interleave_layers__memory_aug_recurrent_mem_tr__dense_activation_relu__prompt'

def setup_inputs():

    _w = lambda a: (lambda t: t.to(torch.bfloat16) if t.is_floating_point() else t)(torch.as_tensor(a))

    def _A_setup():
        B, S, Dm = (1, 2048, 640)
        H, Dh = (32, 128)
        M, seg = (8, 32)
        seg = min(seg, S)
        S = S // seg * seg
        return {'x': _w((lambda *s: torch.randn(*s, dtype=torch.bfloat16) * 0.05)(B, S, Dm)), 'mem0': _w((lambda *s: torch.randn(*s, dtype=torch.bfloat16) * 0.8)(B, M, Dm)), 'Wq': _w((lambda *s: torch.randn(*s, dtype=torch.bfloat16) * 0.8)(Dm, H, Dh) * Dm ** (-0.5)), 'Wk': _w((lambda *s: torch.randn(*s, dtype=torch.bfloat16) * 0.8)(Dm, H, Dh) * Dm ** (-0.5)), 'Wv': _w((lambda *s: torch.randn(*s, dtype=torch.bfloat16) * 0.8)(Dm, H, Dh) * Dm ** (-0.5)), 'Wo': _w((lambda *s: torch.randn(*s, dtype=torch.bfloat16) * 0.8)(H, Dh, Dm) * (H * Dh) ** (-0.5)), 'seg_len': seg}
    _A_in = _A_setup()

    def _B_setup():
        B, S, D, Dff = (1, 2048, 640, 1728)
        return {'x': _w((lambda *s: torch.randn(*s, dtype=torch.bfloat16) * 0.05)(B, S, D)), 'w1': _w((lambda *s: torch.randn(*s, dtype=torch.bfloat16) * 0.05)(D, Dff)), 'w2': _w((lambda *s: torch.randn(*s, dtype=torch.bfloat16) * 0.05)(Dff, D))}
    _B_in = _B_setup()
    return {'A_x': _A_in['x'], 'A_mem0': _A_in['mem0'], 'A_Wq': _A_in['Wq'], 'A_Wk': _A_in['Wk'], 'A_Wv': _A_in['Wv'], 'A_Wo': _A_in['Wo'], 'A_seg_len': _A_in['seg_len'], 'B_x': _B_in['x'], 'B_w1': _B_in['w1'], 'B_w2': _B_in['w2']}

def reference(A_x, A_mem0, A_Wq, A_Wk, A_Wv, A_Wo, A_seg_len, B_x, B_w1, B_w2):

    def _A_ref(x, mem0, Wq, Wk, Wv, Wo, seg_len):
        B, S, Dm = x.shape
        H, Dh = (Wq.shape[1], Wq.shape[2])
        M = mem0.shape[1]
        scale = Dh ** (-0.5)
        n_seg = S // seg_len
        L = M + seg_len
        idx = torch.arange(L)
        mask = (idx[:, None] < M) | (idx[:, None] >= idx[None, :])
        mem = mem0
        outs = []
        for s in range(n_seg):
            xs = x[:, s * seg_len:(s + 1) * seg_len, :].clone()
            h = torch.concatenate([mem, xs], axis=1)
            q = torch.einsum('btd,dhe->bhte', h, Wq)
            k = torch.einsum('btd,dhe->bhte', h, Wk)
            v = torch.einsum('btd,dhe->bhte', h, Wv)
            scores = torch.einsum('bhqe,bhke->bhqk', q, k) * scale
            scores = torch.where(mask[None, None], scores, -1000000000.0)
            p = _softmax(scores, axis=-1)
            o = torch.einsum('bhqk,bhke->bhqe', p, v)
            o = torch.einsum('bhte,hed->btd', o, Wo)
            mem = o[:, :M, :].clone()
            outs.append(o[:, M:, :])
        return torch.concatenate(outs, axis=1)

    def _B_ref(x, w1, w2):
        h = torch.einsum('bsd,df->bsf', x, w1)
        zero = torch.zeros_like(h)
        h = torch.maximum(h, zero)
        return torch.einsum('bsf,fd->bsd', h, w2)
    x = A_x
    x = x + _A_ref(_layernorm(x, axis=-1), A_mem0, A_Wq, A_Wk, A_Wv, A_Wo, A_seg_len)
    x = x + _B_ref(_layernorm(x, axis=-1), B_w1, B_w2)
    x = x + _A_ref(_layernorm(x, axis=-1), A_mem0, A_Wq, A_Wk, A_Wv, A_Wo, A_seg_len)
    x = x + _B_ref(_layernorm(x, axis=-1), B_w1, B_w2)
    return x
```

```python
import re

_REG = re.compile(r'\b([vas])(?:(\d+)|\[(\d+):(\d+)\])')
TRANS = ('v_exp_f32', 'v_log_f32', 'v_rcp_f32', 'v_rsq_f32', 'v_sqrt_f32', 'v_sin_f32', 'v_cos_f32', 'v_rcp_iflag_f32')

def regs_of(op):
    out = set()
    op = op.strip()
    if op.lstrip('-|abs(').startswith('vcc'):
        return {('s', 'vcc')}
    for m in _REG.finditer(op):
        c = m.group(1)
        if m.group(2) is not None:
            out.add((c, int(m.group(2))))
        else:
            for i in range(int(m.group(3)), int(m.group(4)) + 1):
                out.add((c, i))
    return out

def split_ops(s):
    ops, depth, cur = [], 0, ''
    for ch in s:
        if ch in '[(':
            depth += 1
        elif ch in '])':
            depth -= 1
        if ch == ',' and depth == 0:
            ops.append(cur.strip()); cur = ''
        else:
            cur += ch
    if cur.strip():
        ops.append(cur.strip())
    return ops

def vg(rs):
    return {r for r in rs if r[0] in 'va'}
def sg(rs):
    return {r for r in rs if r[0] == 's'}

class Asm:
    def __init__(self):
        self.lines = []
        self.hist = []
        self.nlabel = 0
        self.count = 0
        self.nops = 0

    def raw(self, s):
        self.lines.append(s)

    def comment(self, s):
        self.lines.append('    ; ' + s)

    def newlabel(self, base='L'):
        self.nlabel += 1
        return f'{base}_{self.nlabel}'

    def label(self, name):
        self.lines.append(name + ':')

    def settle(self, n=16):
        while n > 0:
            k = min(n, 16)
            self.i(f's_nop {k-1}')
            n -= k

    def forget(self):
        self.hist = []

    def _classify(self, text):
        t = text.strip()
        mn, _, rest = t.partition(' ')
        ops = split_ops(rest)
        if ops:
            last = ops[-1].split()
            mods = ' '.join(last[1:])
            ops[-1] = last[0] if last else ''
        else:
            mods = ''
        d = dict(mn=mn, ws=1, kind='other', wr=set(), rd=set(), srcc=set(), ab=set(), passes=0, data=set(), trans=False,
                 dpp=False, perm=False, rl=False, m0w=False, m0r=False)
        R = [regs_of(o) for o in ops]
        if mn == 's_nop':
            d['ws'] = int(ops[0], 0) + 1
        elif mn.startswith('v_mfma') or mn.startswith('v_smfmac'):
            d['kind'] = 'mfma'
            d['passes'] = 8 if '32x32' in mn else 4
            d['wr'] = R[0]
            if mn.startswith('v_smfmac'):
                d['srcc'] = R[0]; d['ab'] = R[1] | R[2] | R[3]
            else:
                d['srcc'] = R[3]; d['ab'] = R[1] | R[2]
            d['rd'] = d['srcc'] | d['ab']
        elif mn.startswith('v_'):
            d['kind'] = 'valu'
            base = mn.replace('_e32', '').replace('_e64', '').replace('_dpp', '').replace('_sdwa', '')
            d['trans'] = base in TRANS
            d['dpp'] = mn.endswith('_dpp')
            if base.startswith('v_permlane'):
                d['perm'] = True
                d['wr'] = R[0] | R[1]; d['rd'] = R[0] | R[1]
            elif base == 'v_swap_b32':
                d['wr'] = R[0] | R[1]; d['rd'] = R[0] | R[1]
            elif base in ('v_readfirstlane_b32', 'v_readlane_b32'):
                d['rl'] = True
                d['wr'] = R[0]; d['rd'] = set().union(*R[1:])
            elif base.startswith('v_cmp'):
                d['wr'] = R[0]; d['rd'] = set().union(*R[1:])
            elif base in ('v_add_co_u32', 'v_sub_co_u32', 'v_addc_co_u32', 'v_subb_co_u32', 'v_mad_u64_u32', 'v_div_scale_f32'):
                d['wr'] = R[0] | R[1]; d['rd'] = set().union(*R[2:])
            elif base == 'v_nop':
                pass
            else:
                d['wr'] = R[0]; d['rd'] = set().union(*R[1:]) if len(R) > 1 else set()
                if base in ('v_fmac_f32', 'v_dot2c_f32_bf16', 'v_pk_fmac_f16', 'v_writelane_b32') or d['dpp']:
                    d['rd'] |= R[0]
        elif mn.startswith('ds_'):
            d['kind'] = 'mem'
            if 'read' in mn or 'permute' in mn or 'swizzle' in mn or '_rtn' in mn:
                d['wr'] = R[0]; d['rd'] = set().union(*R[1:])
            else:
                d['rd'] = set().union(*R)
        elif mn.startswith('global_') or mn.startswith('buffer_'):
            d['kind'] = 'vmem'
            islds = (' lds' in (' ' + mods)) or '_lds_' in mn
            if mn in ('buffer_inv', 'buffer_wbl2'):
                pass
            elif islds:
                d['rd'] = set().union(*R); d['m0r'] = True
            elif 'load' in mn:
                d['wr'] = R[0]; d['rd'] = set().union(*R[1:])
            elif 'atomic' in mn and 'sc0' in mods and mn.startswith('global_'):
                d['wr'] = R[0]; d['rd'] = set().union(*R[1:])
            elif 'atomic' in mn and 'sc0' in mods:
                d['wr'] = R[0]; d['rd'] = set().union(*R)
            else:
                d['rd'] = set().union(*R)
                if 'x3' in mn or 'x4' in mn:
                    d['data'] = R[0] if mn.startswith('buffer_') else R[1]
        elif mn.startswith('s_'):
            d['kind'] = 'salu'
            if ops and ops[0] == 'm0':
                d['m0w'] = True
        return d

    def _need(self, p, c):
        n = 0
        pk, ck = p['kind'], c['kind']
        if pk == 'valu':
            wv, wsg = vg(p['wr']), sg(p['wr'])
            if ck == 'mfma' and wv & c['rd']:
                n = max(n, 2)
            if ck == 'valu':
                if (c['perm'] or c['dpp']) and wv & c['rd']:
                    n = max(n, 2)
                if c['rl'] and wv & c['rd']:
                    n = max(n, 1)
                if p['trans'] and not c['trans'] and wv & (c['rd'] | c['wr']):
                    n = max(n, 1)
                if wsg & c['rd']:
                    n = max(n, 4 if c['rl'] or c['mn'].startswith('v_writelane') or c['mn'].startswith('v_div_fmas') else 2)
                if p['mn'].endswith('_sdwa') and wv & (c['rd'] | c['wr']):
                    n = max(n, 1)
            if ck == 'vmem' and wsg & c['rd']:
                n = max(n, 5)
            if p['trans'] and ck in ('mem', 'vmem') and wv & c['rd']:
                n = max(n, 1)
        if pk == 'mfma':
            ps = p['passes']
            D = p['wr']
            if ck == 'mfma':
                if D & c['ab']:
                    n = max(n, ps + 4)
                if D & c['srcc']:
                    if not (D == c['srcc'] and ps == c['passes']):
                        n = max(n, ps + 2)
                elif D & c['wr']:
                    n = max(n, ps + 4)
            elif ck in ('valu', 'mem', 'vmem'):
                if D & (c['rd'] | c['wr']):
                    n = max(n, ps + 4)
                if ck == 'valu' and p['srcc'] & c['wr']:
                    n = max(n, ps - 1)
        if pk == 'vmem' and p['data']:
            if p['data'] & c['wr']:
                n = max(n, 2)
        if p['m0w'] and c['m0r']:
            n = max(n, 1)
        return n

    def i(self, text):
        c = self._classify(text)
        need = 0
        dist = 0
        for p in reversed(self.hist):
            r = self._need(p, c)
            if r - dist > need:
                need = r - dist
            dist += p['ws']
            if dist >= 16:
                break
        if need > 0:
            self.lines.append(f'    s_nop {need-1}')
            self.hist.append(self._classify(f's_nop {need-1}'))
            self.nops += 1
            self.count += 1
        self.lines.append('    ' + text)
        self.hist.append(c)
        self.count += 1
        if len(self.hist) > 40:
            self.hist = self.hist[-24:]

    def __call__(self, text):
        for ln in text.strip().split('\n'):
            ln = ln.strip()
            if not ln:
                continue
            if ln.startswith(';'):
                self.lines.append('    ' + ln)
            elif ln.endswith(':'):
                self.label(ln[:-1])
            else:
                self.i(ln)

    def text(self):
        return '\n'.join(self.lines) + '\n'

def v(i, n=1):
    return f'v{i}' if n == 1 else f'v[{i}:{i+n-1}]'
def a(i, n=1):
    return f'a{i}' if n == 1 else f'a[{i}:{i+n-1}]'
def s(i, n=1):
    return f's{i}' if n == 1 else f's[{i}:{i+n-1}]'
def r(i, n=1):
    if i < 256:
        assert i + n <= 256
        return v(i, n)
    return a(i - 256, n)

def kernel_header(name):
    return f'''.globl {name}
.p2align 8
.type {name},@function
{name}:
'''

def kernel_desc(name, vgpr=512, sgpr=102, accum=256):
    return f'''.section .rodata,"a"
.p2align 6
.amdhsa_kernel {name}
  .amdhsa_next_free_vgpr {vgpr}
  .amdhsa_next_free_sgpr {sgpr}
  .amdhsa_accum_offset {accum}
  .amdhsa_group_segment_fixed_size 0
  .amdhsa_kernarg_size 104
  .amdhsa_user_sgpr_count 2
  .amdhsa_user_sgpr_kernarg_segment_ptr 1
  .amdhsa_system_sgpr_workgroup_id_x 1
.end_amdhsa_kernel
.text
'''

class Cnt:
    def __init__(self, asm, name, cap):
        self.asm, self.name, self.cap = asm, name, cap
        self.issued = 0
        self.done = 0
    def issue(self, text):
        self.asm.i(text)
        self.issued += 1
        return self.issued
    def wait(self, tok):
        if tok is None or tok <= self.done:
            return
        n = self.issued - tok
        n = min(n, self.cap)
        self.asm.i(f's_waitcnt {self.name}({n})')
        self.done = self.issued - n
    def drain(self):
        self.wait(self.issued)
    def reset(self):
        self.done = self.issued
```

```python
from asmgen import *
from layout import *

L_M = 0
L_QL = 10240
L_KX = 14336
L_OL = 22528
L_W = 24576

R1A = [0, 1, 2]
R1B = [3, 4, 5]
R2 = [57, 58, 59]
R3 = [77, 78, 79]
STREAM = [R1A, R1B, R2, R3]
LDSF = [10, 13, 16, 19, 22, 25, 28, 31, 34, 37, 62, 63, 66, 68, 71, 73, 76]
assert len(LDSF) == 17
_str = [f for rr in STREAM for f in rr]
REGF = [f for f in range(80) if f not in _str and f not in LDSF]
assert len(REGF) == 51

V_L16 = 1
V_IDX = 2
V_QKW = 3
V_QKR = 4
V_OW = 5
V_GA = 6
V_MS = 7
V_VX = 8
V_KXS = 9
V_DUM = 10
V_T = 11
V_ACC = 12
V_VACC = 28
V_A = 36
V_SP = 44
V_LB = 48
V_VXF = 72
V_SB = 80
V_W0 = 104

def frag_reg(f):
    k = REGF.index(f)
    return V_W0 + 8 * k if k < 19 else 256 + 8 * (k - 19)

S_SRD = 4
S_H, S_W, S_STEP, S_C = 8, 9, 10, 11
S_MB0, S_MB1, S_MB2 = 12, 13, 14
S_KMV = 15
S_PG = 16
S_KV = 20
S_KV2 = 21
S_KVC = 23
S_HASG = 22
S_PS = 24
S_TAG = 26
S_T0 = 27
S_MM = 30
S_NB = 32
S_M0A = 37
S_FKV = 38
S_FKM = 39
S_SC = 40
S_TS = 42
S_CW = 43
S_T1 = 44
S_T2 = 45
S_MBW = 46
S_TCH = 47
S_ST = 48
S_TM = 60
S_SPIN = 93
S_VXO = 94
S_T3 = 95

def gen_chain(A, Lfail, st='', ts=False, nsteps=NSEG, opt=()):
    srd = s(S_SRD, 4)
    VM = Cnt(A, 'vmcnt', 63)
    LG = Cnt(A, 'lgkmcnt', 15)
    tsn = [0]
    nt = ' nt' if 'kvnt' in opt else ''
    def stamp(name):
        if not ts or name not in ts:
            return
        assert tsn[0] < 14
        A(f's_memtime {s(S_TM+2*tsn[0],2)}')
        tsn[0] += 1
    def stamp_flush():
        if not ts:
            return
        Lf = A.newlabel('CH_NOFL')
        A('s_waitcnt lgkmcnt(0)')
        A(f's_mov_b32 {s(S_TM+28)}, s92')
        A(f's_mov_b32 s92, {s(S_TM)}')
        A(f's_and_b32 {s(S_T0)}, {s(S_STEP)}, 7')
        A(f's_cmp_lg_u32 {s(S_T0)}, 0')
        A(f's_cbranch_scc1 {Lf}')
        A('s_mov_b64 exec, 1')
        for k in range(16):
            A(f'v_mov_b32 {v(V_SP)}, {s(S_TM+2*k)}')
            A(f'buffer_store_dword {v(V_SP)}, off, {srd}, {s(S_TS)} offset:{k*4}')
        A('s_mov_b64 exec, -1')
        A.label(Lf)

    A(f'''
    v_lshrrev_b32 {v(V_T)}, 6, v0
    v_and_b32 v0, 63, v0
    v_readfirstlane_b32 {s(S_W)}, {v(V_T)}
    v_lshlrev_b32 {v(V_L16)}, 4, v0
    ''')
    u, g, t1, t2, t3 = 12, 13, 14, 15, 16
    A(f'''
    v_and_b32 {v(u)}, 15, v0
    v_lshrrev_b32 {v(g)}, 4, v0
    s_mov_b32 {s(S_NB)}, 0x33333333
    s_mov_b32 {s(S_NB+1)}, 0x33333333
    v_mov_b32 {v(t1)}, 0xeeee
    v_mov_b32 {v(t2)}, 0x4444
    v_cndmask_b32 {v(V_IDX)}, {v(t1)}, {v(t2)}, {s(S_NB,2)}
    ''')
    A(f'''
    v_lshrrev_b32 {v(t2)}, 2, {v(u)}
    v_lshlrev_b32 {v(t1)}, 7, {v(t2)}
    v_lshl_add_u32 {v(t1)}, {v(g)}, 5, {v(t1)}
    v_and_b32 {v(t2)}, 3, {v(u)}
    v_lshl_add_u32 {v(t1)}, {v(t2)}, 2, {v(t1)}
    s_lshl_b32 {s(S_T0)}, {s(S_W)}, 10
    s_add_u32 {s(S_T0)}, {s(S_T0)}, {L_QL}
    v_add_u32 {v(V_QKW)}, {s(S_T0)}, {v(t1)}
    ''')
    A(f'''
    v_lshrrev_b32 {v(t1)}, 2, {v(u)}
    v_lshlrev_b32 {v(t1)}, 5, {v(t1)}
    v_and_b32 {v(t2)}, 1, {v(u)}
    v_lshl_add_u32 {v(t1)}, {v(t2)}, 4, {v(t1)}
    v_lshl_add_u32 {v(V_QKR)}, {v(g)}, 7, {v(t1)}
    ''')
    A(f'''
    s_lshl_b32 {s(S_T0)}, {s(S_W)}, 1
    v_lshrrev_b32 {v(t1)}, 1, {v(g)}
    v_add_u32 {v(t1)}, {s(S_T0)}, {v(t1)}
    v_and_b32 {v(t1)}, 3, {v(t1)}
    v_lshl_add_u32 {v(t1)}, {v(t1)}, 4, {v(u)}
    v_lshlrev_b32 {v(t1)}, 4, {v(t1)}
    v_and_b32 {v(t2)}, 1, {v(g)}
    v_lshl_add_u32 {v(t1)}, {v(t2)}, 3, {v(t1)}
    s_lshr_b32 {s(S_T0)}, {s(S_W)}, 1
    s_lshl_b32 {s(S_T0)}, {s(S_T0)}, 10
    s_add_u32 {s(S_T0)}, {s(S_T0)}, {L_OL}
    v_add_u32 {v(V_OW)}, {s(S_T0)}, {v(t1)}
    ''')
    sT, sWp, sTp = S_T0, S_T1, S_T2
    A(f'''
    s_lshl_b32 {s(sT)}, {s(S_W)}, 5
    s_add_u32 {s(sT)}, {s(sT)}, {s(S_H)}
    s_lshr_b32 {s(S_T1)}, {s(S_H)}, 1
    s_add_u32 {s(S_T1)}, {s(S_T1)}, 64
    s_cmp_lt_u32 {s(S_W)}, 2
    s_cselect_b32 {s(sT)}, {s(sT)}, {s(S_T1)}
    s_cselect_b32 {s(S_HASG)}, 1, 0
    s_and_b32 {s(S_T1)}, {s(S_H)}, 1
    s_lshl_b32 {s(S_T1)}, {s(S_T1)}, 2
    s_add_u32 {s(S_T1)}, {s(S_T1)}, {s(S_W)}
    s_cmp_eq_u32 {s(S_T1)}, 2
    s_cselect_b32 {s(S_HASG)}, 1, {s(S_HASG)}
    ''')
    A(f'''
    v_lshrrev_b32 {v(t1)}, 3, v0
    v_mul_u32_u24 {v(t1)}, {4*PB_SZ}, {v(t1)}
    v_and_b32 {v(t3)}, 7, v0
    v_lshl_add_u32 {v(t1)}, {v(t3)}, 4, {v(t1)}
    s_lshl_b32 {s(S_T1)}, {s(sT)}, 7
    v_add_u32 {v(V_GA)}, {s(S_T1)}, {v(t1)}
    ''')
    hh, lp, Bv, a0 = 17, 18, 19, 20
    A(f'''
    s_mul_i32 {s(sWp)}, {s(sT)}, 205
    s_lshr_b32 {s(sWp)}, {s(sWp)}, 12
    s_mul_i32 {s(sTp)}, {s(sWp)}, 20
    s_sub_u32 {s(sTp)}, {s(sT)}, {s(sTp)}
    s_mul_i32 {s(sWp)}, {s(sWp)}, 5
    v_lshrrev_b32 {v(hh)}, 1, {v(g)}
    s_cmp_lt_u32 {s(sTp)}, 16
    s_cbranch_scc0 {{L1}}
    s_lshr_b32 {s(sT)}, {s(sTp)}, 3
    s_lshl_b32 {s(sT)}, {s(sT)}, 1
    s_add_u32 {s(sWp)}, {s(sWp)}, {s(sT)}
    v_add_u32 {v(Bv)}, {s(sWp)}, {v(hh)}
    s_and_b32 {s(sT)}, {s(sTp)}, 7
    s_lshl_b32 {s(sT)}, {s(sT)}, 3
    v_add_u32 {v(lp)}, {s(sT)}, {v(t3)}
    s_branch {{L2}}
    {{L1}}:
    s_add_u32 {s(sWp)}, {s(sWp)}, 4
    v_mov_b32 {v(Bv)}, {s(sWp)}
    s_sub_u32 {s(sT)}, {s(sTp)}, 16
    s_lshl_b32 {s(sT)}, {s(sT)}, 3
    v_add_u32 {v(lp)}, {s(sT)}, {v(t3)}
    v_lshl_add_u32 {v(lp)}, {v(lp)}, 1, {v(hh)}
    {{L2}}:
    v_lshlrev_b32 {v(a0)}, 9, {v(Bv)}
    v_bfe_u32 {v(t1)}, {v(lp)}, 3, 1
    v_lshl_add_u32 {v(a0)}, {v(t1)}, 8, {v(a0)}
    v_lshrrev_b32 {v(t1)}, 4, {v(lp)}
    v_lshl_add_u32 {v(a0)}, {v(t1)}, 6, {v(a0)}
    v_and_b32 {v(t1)}, 1, {v(lp)}
    v_lshl_add_u32 {v(a0)}, {v(t1)}, 5, {v(a0)}
    v_and_b32 {v(t1)}, 1, {v(g)}
    v_lshl_add_u32 {v(a0)}, {v(t1)}, 4, {v(a0)}
    v_bfe_u32 {v(t1)}, {v(lp)}, 1, 2
    v_lshl_add_u32 {v(V_MS)}, {v(t1)}, 2, {v(a0)}
    '''.format(L1=A.newlabel('CH_P'), L2=A.newlabel('CH_P')))
    A(f'''
    v_lshrrev_b32 {v(t1)}, 1, {v(g)}
    v_lshlrev_b32 {v(t1)}, 10, {v(t1)}
    v_and_b32 {v(t2)}, 1, {v(g)}
    v_lshl_add_u32 {v(t1)}, {v(t2)}, 9, {v(t1)}
    v_lshl_add_u32 {v(V_VX)}, {v(u)}, 4, {v(t1)}
    s_lshr_b32 {s(S_T0)}, {s(S_W)}, 1
    s_lshl_b32 {s(S_T0)}, {s(S_T0)}, 12
    s_and_b32 {s(S_T1)}, {s(S_W)}, 1
    s_lshl_b32 {s(S_T1)}, {s(S_T1)}, 8
    s_add_u32 {s(S_T0)}, {s(S_T0)}, {s(S_T1)}
    s_add_u32 {s(S_VXO)}, {s(S_T0)}, 8192
    ''')
    A(f'''
    v_lshlrev_b32 {v(t1)}, 9, {v(g)}
    v_lshrrev_b32 {v(t2)}, 3, {v(u)}
    v_lshl_add_u32 {v(t1)}, {v(t2)}, 8, {v(t1)}
    v_and_b32 {v(t2)}, 7, {v(u)}
    v_lshl_add_u32 {v(t1)}, {v(t2)}, 4, {v(t1)}
    s_lshr_b32 {s(S_T0)}, {s(S_W)}, 1
    s_lshl_b32 {s(S_T0)}, {s(S_T0)}, 7
    s_and_b32 {s(S_T1)}, {s(S_W)}, 1
    s_lshl_b32 {s(S_T1)}, {s(S_T1)}, 12
    s_add_u32 {s(S_T0)}, {s(S_T0)}, {s(S_T1)}
    v_add_u32 {v(V_KXS)}, {s(S_T0)}, {v(t1)}
    s_lshl_b32 {s(S_M0A)}, {s(S_W)}, 11
    s_add_u32 {s(S_M0A)}, {s(S_M0A)}, {L_KX}
    ''')
    A(f'''
    s_mov_b32 {s(S_MM)}, 0x00ff00ff
    s_mov_b32 {s(S_MM+1)}, 0x00ff00ff
    s_mov_b32 {s(S_SC)}, 0x3e0293ee
    s_mov_b32 {s(S_SC+1)}, 0x3e0293ee
    s_mov_b32 {s(S_STEP)}, 0
    s_mov_b32 {s(S_TAG)}, 1
    s_mul_i32 {s(S_MB0)}, {s(S_C)}, {3*MB_SZ}
    s_add_u32 {s(S_MB0)}, {s(S_MB0)}, {MB_OFF}
    s_add_u32 {s(S_MB1)}, {s(S_MB0)}, {MB_SZ}
    s_add_u32 {s(S_MB2)}, {s(S_MB1)}, {MB_SZ}
    s_mul_i32 {s(S_MBW)}, {s(S_W)}, 2560
    s_mul_i32 {s(S_T0)}, {s(S_C)}, {NSEG*KVB}
    s_lshl_b32 {s(S_T1)}, {s(S_H)}, 14
    s_add_u32 {s(S_T0)}, {s(S_T0)}, {s(S_T1)}
    s_add_u32 {s(S_KV)}, {s(S_T0)}, {KV_OFF}
    s_lshr_b32 {s(S_T0)}, {s(S_T0)}, 2
    s_add_u32 {s(S_KMV)}, {s(S_T0)}, {KMV_OFF}
    s_lshl_b32 {s(S_T0)}, {s(S_W)}, 10
    s_add_u32 {s(S_KMV)}, {s(S_KMV)}, {s(S_T0)}
    s_mul_i32 {s(S_T0)}, {s(S_C)}, {H*PB_SZ}
    s_add_u32 {s(S_PG)}, {s(S_T0)}, {PB_OFF}
    ''')
    for i in range(1, 4):
        A(f's_add_u32 {s(S_PG+i)}, {s(S_PG+i-1)}, {PB_SZ}')
    A(f'''
    s_mul_i32 {s(S_T0)}, {s(S_H)}, {PB_SZ}
    s_add_u32 {s(S_PS)}, {s(S_PG)}, {s(S_T0)}
    s_add_u32 {s(S_PS)}, {s(S_PS)}, {s(S_MBW)}
    s_lshl_b32 {s(S_T0)}, {s(S_H)}, 2
    s_add_u32 {s(S_T0)}, {s(S_T0)}, {s(S_W)}
    s_lshr_b32 {s(S_T1)}, {s(S_T0)}, 1
    s_mul_i32 {s(S_CW)}, {s(S_T1)}, 81920
    s_and_b32 {s(S_T1)}, {s(S_W)}, 1
    s_lshl_b32 {s(S_T1)}, {s(S_T1)}, 8
    s_add_u32 {s(S_CW)}, {s(S_CW)}, {s(S_T1)}
    s_mul_i32 {s(S_T1)}, {s(S_C)}, {NSEG*512}
    s_lshl_b32 {s(S_T2)}, {s(S_H)}, 4
    s_add_u32 {s(S_FKV)}, {s(S_T1)}, {s(S_T2)}
    s_add_u32 {s(S_FKV)}, {s(S_FKV)}, {FL('KV',0,0)}
    s_lshl_b32 {s(S_T2)}, {s(S_T0)}, 2
    s_add_u32 {s(S_FKM)}, {s(S_T1)}, {s(S_T2)}
    s_add_u32 {s(S_FKM)}, {s(S_FKM)}, {FL('KM',0,0)-512}
    s_lshl_b32 {s(S_TS)}, {s(S_T0)}, 13
    s_lshl_b32 {s(S_T2)}, {s(S_C)}, 20
    s_add_u32 {s(S_TS)}, {s(S_TS)}, {s(S_T2)}
    s_add_u32 {s(S_TS)}, {s(S_TS)}, {TS_OFF}
    s_lshl_b32 {s(S_TCH)}, {s(S_W)}, 12
    s_add_u32 {s(S_TCH)}, {s(S_TCH)}, {KVB}
    ''')
    def faddr(dst, f):
        if f < 60:
            if f < 40:
                kap, tl = f // 4, f % 4
                base, pi = (WQ_OFF if tl < 2 else WK_OFF), tl & 1
            else:
                kap, pi, base = (f - 40) // 2, f & 1, WV_OFF
            A(f's_add_u32 {s(dst)}, {s(S_CW)}, {base + pi*40960 + kap*4096}')
        else:
            beta, kap, pi = (f - 60) // 4, ((f - 60) >> 1) & 1, f & 1
            A(f's_mul_i32 {s(S_T3)}, {s(S_W)}, 5')
            A(f's_add_u32 {s(S_T3)}, {s(S_T3)}, {beta}')
            A(f's_lshr_b32 {s(dst)}, {s(S_T3)}, 1')
            A(f's_lshl_b32 {s(dst)}, {s(dst)}, 19')
            A(f's_and_b32 {s(S_T3)}, {s(S_T3)}, 1')
            A(f's_lshl_b32 {s(S_T3)}, {s(S_T3)}, 8')
            A(f's_add_u32 {s(dst)}, {s(dst)}, {s(S_T3)}')
            A(f's_lshl_b32 {s(S_T3)}, {s(S_H)}, 13')
            A(f's_add_u32 {s(dst)}, {s(dst)}, {s(S_T3)}')
            A(f's_add_u32 {s(dst)}, {s(dst)}, {WO_OFF + pi*262144 + kap*4096}')
    for k, f in enumerate(_str):
        faddr(S_ST + k, f)
    n = 0
    for f in REGF:
        faddr(S_T0, f)
        dst = frag_reg(f)
        VM.issue(f'buffer_load_dwordx4 {r(dst,4)}, {v(V_VX)}, {srd}, {s(S_T0)} offen')
        VM.issue(f'buffer_load_dwordx4 {r(dst+4,4)}, {v(V_VX)}, {srd}, {s(S_T0)} offen offset:2048')
        VM.wait(VM.issued - 40)
    A(f's_mul_i32 {s(S_T1)}, {s(S_W)}, {17*2048}')
    A(f's_add_u32 {s(S_T1)}, {s(S_T1)}, {L_W}')
    A(f'v_add_u32 v0, {s(S_T1)}, {v(V_L16)}')
    for k, f in enumerate(LDSF):
        faddr(S_T0, f)
        A(f's_add_u32 m0, {s(S_T1)}, {k*2048}')
        A(f's_add_u32 {s(S_T2)}, {s(S_T0)}, 1024')
        VM.issue(f'buffer_load_dwordx4 {v(V_VX)}, {srd}, {s(S_T0)} offen lds')
        VM.issue(f'buffer_load_dwordx4 {v(V_VX)}, {srd}, {s(S_T2)} offen offset:1024 lds')
        VM.wait(VM.issued - 40)
    VM.drain()
    A(f's_mov_b32 m0, {s(S_M0A)}')

    str_tok = {}
    def sdst(f):
        for rr in STREAM:
            if f in rr:
                return (V_LB if rr is R1B else V_SB) + 8 * rr.index(f)
    def stream1(f, half=None):
        if 'nostream' in opt:
            str_tok[f] = None
            return
        sb = s(S_ST + _str.index(f))
        dst = sdst(f)
        if half in (None, 0):
            VM.issue(f'buffer_load_dwordx4 {v(dst,4)}, {v(V_VX)}, {srd}, {sb} offen')
        if half in (None, 1):
            str_tok[f] = VM.issue(f'buffer_load_dwordx4 {v(dst+4,4)}, {v(V_VX)}, {srd}, {sb} offen offset:2048')
    def kv_wait(first_loaded):
        Lp = A.newlabel('CH_KVP'); Lo = A.newlabel('CH_KVO'); Lc = A.newlabel('CH_KVC')
        A(f's_mov_b32 {s(S_SPIN)}, 0')
        A('s_mov_b64 exec, 15')
        if first_loaded:
            A(f's_branch {Lc}')
        A.label(Lp)
        A(f'v_lshrrev_b32 {v(V_T)}, 2, {v(V_L16)}')
        A(f'buffer_load_dword {v(V_DUM)}, {v(V_T)}, {srd}, {s(S_FKV)} offen sc1')
        A('s_waitcnt vmcnt(0)')
        A.label(Lc)
        A(f'v_cmp_eq_u32 vcc, 0, {v(V_DUM)}')
        A(f's_cbranch_vccz {Lo}')
        A(f's_add_u32 {s(S_SPIN)}, {s(S_SPIN)}, 1')
        A(f's_cmp_lt_u32 {s(S_SPIN)}, {SPIN_LIMIT}')
        A(f's_cbranch_scc1 {Lp}')
        A(f's_branch {Lfail}')
        A.label(Lo)
        A('s_mov_b64 exec, -1')
    def kx_load():
        A(f's_add_u32 {s(S_KV2)}, {s(S_KV)}, 1024')
        VM.issue(f'buffer_load_dwordx4 {v(V_KXS)}, {srd}, {s(S_KV)} offen sc1{nt} lds')
        VM.issue(f'buffer_load_dwordx4 {v(V_KXS)}, {srd}, {s(S_KV2)} offen offset:1024 sc1{nt} lds')
    def vx_load():
        VM.issue(f'buffer_load_dwordx4 {v(V_VXF,4)}, {v(V_VX)}, {srd}, {s(S_KVC)} offen sc1{nt}')
        return VM.issue(f'buffer_load_dwordx4 {v(V_VXF+4,4)}, {v(V_VX)}, {srd}, {s(S_KVC)} offen offset:2048 sc1{nt}')

    kv_wait(False)
    kx_load()
    A(f's_add_u32 {s(S_KVC)}, {s(S_KV)}, {s(S_VXO)}')
    A(f's_add_u32 {s(S_KV)}, {s(S_KV)}, {KVB}')
    A(f's_add_u32 {s(S_FKV)}, {s(S_FKV)}, 512')
    for f in R1A + R1B:
        stream1(f)
    A(f'v_mov_b32 {v(V_DUM)}, 0')
    if ts:
        for k in range(33):
            A(f's_mov_b32 {s(S_TM+k)}, 0')

    Lstep = A.newlabel('CH_STEP')
    A.label(Lstep)
    A.forget()
    VM.reset(); LG.reset()
    for f in R1A + R1B:
        str_tok[f] = None
    lds_tok = {}
    lb_next = [0]
    lb_n = [3]
    lds_buf = {}
    def lds_fetch(f):
        b = V_LB + 8 * (lb_next[0] % lb_n[0]); lb_next[0] += 1
        k = LDSF.index(f)
        LG.issue(f'ds_read_b128 {v(b,4)}, v0 offset:{k*2048}')
        lds_tok[f] = LG.issue(f'ds_read_b128 {v(b+4,4)}, v0 offset:{k*2048+1024}')
        lds_buf[f] = b
    def breg(f):
        if f in REGF:
            return r(frag_reg(f), 8)
        if f in LDSF:
            LG.wait(lds_tok[f])
            return v(lds_buf[f], 8)
        VM.wait(str_tok.get(f))
        return v(sdst(f), 8)
    def smf(acc, areg, f):
        b = breg(f)
        A(f'v_smfmac_f32_16x16x64_bf16 {v(acc,4)}, {v(areg,4)}, {b}, {v(V_IDX)}')

    stamp('top')
    for i in range(12):
        A(f'v_mov_b64 {v(V_ACC+2*i,2)}, 0')
    Lpm = A.newlabel('CH_PM'); Lpo = A.newlabel('CH_PMO')
    A(f's_add_u32 {s(S_T0)}, {s(S_MB0)}, {s(S_MBW)}')
    A(f'v_lshrrev_b32 {v(V_T)}, 1, {v(V_L16)}')
    A(f's_mov_b32 {s(S_SPIN)}, 0')
    A.label(Lpm)
    A(f'buffer_load_dwordx4 {v(V_A,4)}, {v(V_L16)}, {srd}, {s(S_T0)} offen sc1')
    A(f'buffer_load_dwordx4 {v(V_A+4,4)}, {v(V_L16)}, {srd}, {s(S_T0)} offen offset:1024 sc1')
    A(f'buffer_load_dwordx2 {v(V_A+8,2)}, {v(V_T)}, {srd}, {s(S_T0)} offen offset:2048 sc1')
    m = V_A + 10
    A('s_waitcnt vmcnt(1)')
    A(f'v_max3_u32 {v(m)}, {v(V_A)}, {v(V_A+1)}, {v(V_A+2)}')
    A(f'v_max3_u32 {v(m+1)}, {v(V_A+3)}, {v(V_A+4)}, {v(V_A+5)}')
    A(f'v_max3_u32 {v(m)}, {v(m)}, {v(V_A+6)}, {v(V_A+7)}')
    A('s_waitcnt vmcnt(0)')
    A(f'v_max3_u32 {v(m+1)}, {v(m+1)}, {v(V_A+8)}, {v(V_A+9)}')
    A(f'v_max_u32 {v(m)}, {v(m)}, {v(m+1)}')
    A(f'v_cmp_eq_u32 vcc, -1, {v(m)}')
    A(f'v_add_u32 {v(m)}, {s(S_MBW)}, {v(V_L16)}')
    A(f'v_add_u32 {v(m+1)}, {s(S_MBW)}, {v(V_T)}')
    A(f's_cbranch_vccz {Lpo}')
    A(f's_add_u32 {s(S_SPIN)}, {s(S_SPIN)}, 1')
    A(f's_cmp_lt_u32 {s(S_SPIN)}, {SPIN_LIMIT}')
    A(f's_cbranch_scc1 {Lpm}')
    A(f's_branch {Lfail}')
    A.label(Lpo)
    VM.reset()
    stamp('mok')
    LG.issue(f'ds_write_b128 {v(m)}, {v(V_A,4)} offset:{L_M}')
    LG.issue(f'ds_write_b128 {v(m)}, {v(V_A+4,4)} offset:{L_M+1024}')
    LG.issue(f'ds_write_b64 {v(m+1)}, {v(V_A+8,2)} offset:{L_M+2048}')
    if ts:
        A(f's_mov_b32 {s(S_TM+30)}, {s(S_SPIN)}')
    Lnk = A.newlabel('CH_NK')
    A(f's_cmp_ge_u32 {s(S_STEP)}, {nsteps-1}')
    A(f's_cbranch_scc1 {Lnk}')
    kv_wait(True)
    A.label(Lnk)
    LG.drain()
    A('s_barrier')
    stamp('b1')
    atok = {}
    abuf = {}
    def aread(seq, kap, base=L_M):
        b = V_A + 4 * ((seq + 2) % 3) if seq < 10 else V_A + 4 * (seq % 2)
        abuf[seq] = b
        atok[seq] = LG.issue(f'ds_read_b128 {v(b,4)}, {v(V_L16)} offset:{base+kap*1024}')
    aread(0, 0); aread(1, 1); aread(2, 2)
    Lra = A.newlabel('CH_RA')
    A(f'v_mov_b32 {v(V_T)}, -1')
    A(f's_cmp_eq_u32 {s(S_HASG)}, 0')
    A(f's_cbranch_scc1 {Lra}')
    A(f's_mov_b64 exec, {s(S_MM,2)}')
    A(f'buffer_store_dword {v(V_T)}, {v(V_MS)}, {srd}, {s(S_MB2)} offen{st}')
    A('s_mov_b64 exec, -1')
    A.label(Lra)
    qk_lds = [f for f in LDSF if f < 40]
    vm_q = []
    def flag_km():
        A(f's_cmp_eq_u32 {s(S_STEP)}, 0')
        A(f's_cselect_b32 exec_lo, 0, 1')
        A(f's_mov_b32 exec_hi, 0')
        VM.issue(f'buffer_store_dword {v(V_IDX)}, off, {srd}, {s(S_FKM)} sc1')
        A('s_mov_b64 exec, -1')
    def flag_sample():
        A(f's_add_u32 {s(S_FKV)}, {s(S_FKV)}, 512')
        A(f'v_lshrrev_b32 {v(V_T)}, 2, {v(V_L16)}')
        A('s_mov_b64 exec, 15')
        VM.issue(f'buffer_load_dword {v(V_DUM)}, {v(V_T)}, {srd}, {s(S_FKV)} offen sc1')
        A('s_mov_b64 exec, -1')
    def ktouch(off):
        VM.issue(f'buffer_load_dword {v(V_DUM)}, {v(V_KXS)}, {srd}, {s(S_KV)} offen offset:{off} sc1{nt}')
    vx = {}
    def vx_half(hf):
        vx['t'] = VM.issue(f'buffer_load_dwordx4 {v(V_VXF+4*hf,4)}, {v(V_VX)}, {srd}, {s(S_KVC)} offen offset:{2048*hf} sc1{nt}')
    for kap in range(10):
        LG.wait(atok[kap])
        for t in range(4):
            f = kap * 4 + t
            smf(V_ACC + 4 * t, abuf[kap], f)
            if (f in LDSF or f in R1B) and qk_lds:
                lds_fetch(qk_lds.pop(0))
            if f in R1A:
                g_ = R2[R1A.index(f)]
                vm_q.append(lambda g_=g_: stream1(g_, 0)); vm_q.append(lambda g_=g_: stream1(g_, 1))
            if f == 2:
                vm_q.append(lambda: vx_half(0)); vm_q.append(lambda: vx_half(1))
                if 'notouch' not in opt:
                    vm_q.append(lambda: ktouch(0))
                vm_q.append(flag_sample)
                if 'nopub' not in opt:
                    vm_q.append(flag_km)
            if vm_q:
                vm_q.pop(0)()
        stamp(f'q{kap}')
        nxt = kap + 3
        if nxt < 12:
            aread(nxt, nxt % 10)
    stamp('qk')
    vseq = [(kap, pi) for kap in range(10) for pi in range(2)]
    def vstep(n):
        for _ in range(n):
            if not vseq:
                return
            kap, pi = vseq.pop(0)
            seq = 10 + kap
            LG.wait(atok[seq])
            f = 40 + kap * 2 + pi
            smf(V_VACC + 4 * pi, abuf[seq], f)
            if pi == 1 and kap + 2 < 10:
                aread(seq + 2, kap + 2)
    q0, q1, k0, k1 = V_ACC, V_ACC + 4, V_ACC + 8, V_ACC + 12
    KT = {}
    ktok = {}
    for i, (t, kk) in enumerate([(0, 0), (1, 0), (0, 1), (1, 1)]):
        KT[(t, kk)] = V_LB + 4 * i
        ktok[(t, kk)] = LG.issue(f'ds_read_b128 {v(V_LB+4*i,4)}, {v(V_L16)} offset:{L_KX+(t*4+kk)*1024}')
    vstep(1)
    for (x0_, x1_) in ((q0, q1), (k0, k1)):
        A(f'v_pk_add_f32 {v(x0_,2)}, {v(x0_,2)}, {v(x0_+2,2)}')
        A(f'v_pk_add_f32 {v(x1_,2)}, {v(x1_,2)}, {v(x1_+2,2)}')
        A(f'v_cvt_pk_bf16_f32 {v(x0_)}, {v(x0_)}, {v(x1_)}')
        A(f'v_cvt_pk_bf16_f32 {v(x0_+1)}, {v(x0_+1)}, {v(x1_+1)}')
        o_ = 0 if x0_ == q0 else 128
        wt = LG.issue(f'ds_write2_b32 {v(V_QKW)}, {v(x0_)}, {v(x0_+1)} offset0:{o_} offset1:{o_+4}')
    vstep(1)
    LG.wait(wt)
    A('s_barrier')
    stamp('b2')
    SM, S0, S1 = V_SP, V_LB + 16, V_LB + 20
    rb = [V_ACC + 4 * i for i in range(4)]
    qtok, mtok = {}, {}
    def qread(kk, b):
        qtok[kk] = (LG.issue(f'ds_read_b128 {v(b,4)}, {v(V_QKR)} offset:{L_QL+kk*1024}'), b)
    def mread(kk, b):
        mtok[kk] = (LG.issue(f'ds_read_b128 {v(b,4)}, {v(V_QKR)} offset:{L_QL+512+kk*1024}'), b)
    qread(0, rb[0]); qread(1, rb[2]); mread(0, rb[1]); mread(1, rb[3])
    vstep(3)
    def smm(acc, areg, breg_, first):
        c = '0' if first else v(acc, 4)
        A(f'v_mfma_f32_16x16x32_bf16 {v(acc,4)}, {v(areg,4)}, {v(breg_,4)}, {c}')
    for kk in range(4):
        LG.wait(qtok[kk][0])
        LG.wait(ktok[(0, kk)]); smm(S0, KT[(0, kk)], qtok[kk][1], kk == 0)
        if kk < 2:
            ktok[(0, kk + 2)] = LG.issue(f'ds_read_b128 {v(KT[(0,kk)],4)}, {v(V_L16)} offset:{L_KX+(kk+2)*1024}'); KT[(0, kk + 2)] = KT[(0, kk)]
        LG.wait(ktok[(1, kk)]); smm(S1, KT[(1, kk)], qtok[kk][1], kk == 0)
        if kk < 2:
            ktok[(1, kk + 2)] = LG.issue(f'ds_read_b128 {v(KT[(1,kk)],4)}, {v(V_L16)} offset:{L_KX+(4+kk+2)*1024}'); KT[(1, kk + 2)] = KT[(1, kk)]
        LG.wait(mtok[kk][0]); smm(SM, mtok[kk][1], qtok[kk][1], kk == 0)
        if kk < 2:
            qread(kk + 2, qtok[kk][1]); mread(kk + 2, mtok[kk][1])
        if kk == 1:
            vstep(2)
    stamp('s')
    vstep(3)
    mx, mx2 = V_ACC, V_ACC + 1
    PT, PB_, PUB = V_ACC + 4, V_ACC + 8, V_ACC + 12
    VMP = PUB + 2
    A(f'v_max3_f32 {v(mx)}, {v(S0)}, {v(S0+1)}, {v(S0+2)}')
    A(f'v_max3_f32 {v(mx2)}, {v(S0+3)}, {v(S1)}, {v(S1+1)}')
    A(f'v_max3_f32 {v(mx)}, {v(mx)}, {v(S1+2)}, {v(S1+3)}')
    A(f'v_max3_f32 {v(mx2)}, {v(mx2)}, {v(SM)}, {v(SM+1)}')
    A(f'v_max_f32 {v(mx)}, {v(mx)}, {v(mx2)}')
    A(f'v_max_f32 {v(mx2)}, {v(mx)}, {v(mx2)}')
    vstep(1)
    A(f'v_mov_b32 {v(PB_+1)}, 0')
    A(f'v_permlane32_swap_b32 {v(mx)}, {v(mx2)}')
    A(f'v_max_f32 {v(mx)}, {v(mx)}, {v(mx2)}')
    A(f'v_max_f32 {v(mx2)}, {v(mx)}, {v(mx2)}')
    vstep(1)
    A(f'v_mov_b32 {v(PB_+2)}, 0')
    A(f'v_permlane16_swap_b32 {v(mx)}, {v(mx2)}')
    A(f'v_max_f32 {v(mx)}, {v(mx)}, {v(mx2)}')
    kmt = LG.issue(f'ds_read2_b32 {v(PUB,2)}, {v(V_QKW)} offset0:128 offset1:132')
    A(f'v_mul_f32 {v(mx)}, {s(S_SC)}, {v(mx)}')
    pairs = [S0, S0 + 2, S1, S1 + 2, SM]
    for x in pairs:
        A(f'v_pk_fma_f32 {v(x,2)}, {v(x,2)}, {s(S_SC,2)}, {v(mx,2)} op_sel_hi:[1,1,0] neg_lo:[0,0,1] neg_hi:[0,0,1]')
        vstep(1)
    allS = [S0 + i for i in range(8)] + [SM, SM + 1]
    for i, x in enumerate(allS):
        A(f'v_exp_f32 {v(x)}, {v(x)}')
        if i % 2 == 1 and i >= 3 and i < 9:
            j = (i - 3) // 2
            vstep(1)
            A(f'v_cvt_pk_bf16_f32 {v(PT+j)}, {v(S0+2*j)}, {v(S0+2*j+1)}')
    assert not vseq, vseq
    A(f'v_cvt_pk_bf16_f32 {v(PT+3)}, {v(S0+6)}, {v(S0+7)}')
    A(f'v_cvt_pk_bf16_f32 {v(PB_)}, {v(SM)}, {v(SM+1)}')
    A(f'v_cvt_pk_bf16_f32 {v(PB_+3)}, {v(SM)}, {v(SM+1)}')
    stamp('sm')
    VM.wait(vx['t'])
    O0, O1 = V_A, V_A + 4
    l, l2 = V_ACC, V_ACC + 2
    A(f'v_mfma_f32_16x16x32_bf16 {v(O0,4)}, {v(V_VXF,4)}, {v(PT,4)}, 0')
    A(f'v_pk_add_f32 {v(l,2)}, {v(S0,2)}, {v(S0+2,2)}')
    A(f'v_pk_add_f32 {v(l2,2)}, {v(S1,2)}, {v(S1+2,2)}')
    A(f'v_mfma_f32_16x16x32_bf16 {v(O1,4)}, {v(V_VXF+4,4)}, {v(PT,4)}, 0')
    for pi in range(2):
        b = V_VACC + 4 * pi
        A(f'v_pk_add_f32 {v(b,2)}, {v(b,2)}, {v(b+2,2)}')
    for pi in range(2):
        b = V_VACC + 4 * pi
        A(f'v_cvt_pk_bf16_f32 {v(VMP+pi)}, {v(b)}, {v(b+1)}')
    A(f'v_pk_add_f32 {v(l,2)}, {v(l,2)}, {v(SM,2)}')
    A(f'v_pk_add_f32 {v(l,2)}, {v(l,2)}, {v(l2,2)}')
    A(f'v_mfma_f32_16x16x16_bf16 {v(O0,4)}, {v(VMP,2)}, {v(PB_,2)}, {v(O0,4)}')
    A(f'v_add_f32 {v(l2)}, {v(l)}, {v(l+1)}')
    A(f'v_add_f32 {v(l)}, {v(l)}, {v(l+1)}')
    A(f'v_mfma_f32_16x16x16_bf16 {v(O1,4)}, {v(VMP,2)}, {v(PB_+2,2)}, {v(O1,4)}')
    stream1(R3[0])
    A(f'v_permlane32_swap_b32 {v(l)}, {v(l2)}')
    A(f'v_add_f32 {v(l+1)}, {v(l)}, {v(l2)}')
    A(f'v_add_f32 {v(l)}, {v(l)}, {v(l2)}')
    stream1(R3[1])
    A(f'v_permlane16_swap_b32 {v(l)}, {v(l+1)}')
    A(f'v_add_f32 {v(l)}, {v(l)}, {v(l+1)}')
    A(f'v_rcp_f32 {v(l)}, {v(l)}')
    x0 = V_SP
    A(f'v_cndmask_b32 {v(x0)}, {v(O0+1)}, {v(O0)}, {s(S_NB,2)}')
    A(f'v_cndmask_b32 {v(x0+1)}, {v(O1+1)}, {v(O1)}, {s(S_NB,2)}')
    A(f'v_cndmask_b32 {v(x0+2)}, {v(O0+3)}, {v(O0+2)}, {s(S_NB,2)}')
    A(f'v_cndmask_b32 {v(x0+3)}, {v(O1+3)}, {v(O1+2)}, {s(S_NB,2)}')
    A(f'v_pk_mul_f32 {v(x0,2)}, {v(x0,2)}, {v(l,2)} op_sel_hi:[1,0]')
    A(f'v_pk_mul_f32 {v(x0+2,2)}, {v(x0+2,2)}, {v(l,2)} op_sel_hi:[1,0]')
    A(f'v_cvt_pk_bf16_f32 {v(x0)}, {v(x0)}, {v(x0+1)}')
    A(f'v_cvt_pk_bf16_f32 {v(x0+1)}, {v(x0+2)}, {v(x0+3)}')
    wt = LG.issue(f'ds_write_b64 {v(V_OW)}, {v(x0,2)}')
    stamp('ow')
    stream1(R3[2])
    if 'touch2' in opt:
        pass
    if 'nopub' not in opt:
        VM.issue(f'buffer_store_dwordx4 {v(PUB,4)}, {v(V_L16)}, {srd}, {s(S_KMV)} offen sc1')
    WA = [V_VACC, V_LB + 16, V_VXF, V_ACC, V_ACC + 8]
    for b in WA[:2]:
        for i in range(4):
            A(f'v_mov_b64 {v(b+2*i,2)}, 0')
    LG.wait(wt)
    A('s_barrier')
    stamp('b3')
    o0 = LG.issue(f'ds_read_b128 {v(V_A,4)}, {v(V_L16)} offset:{L_OL}')
    o1 = LG.issue(f'ds_read_b128 {v(V_A+4,4)}, {v(V_L16)} offset:{L_OL+1024}')
    lb_next[0] = 0; lb_n[0] = 2
    wo_lds = [f for f in LDSF if f >= 60]
    lds_fetch(wo_lds.pop(0)); lds_fetch(wo_lds.pop(0))
    for b in WA[2:4]:
        for i in range(4):
            A(f'v_mov_b64 {v(b+2*i,2)}, 0')
    order = list(range(60, 80))
    OUT = V_SP
    pend = []
    for bb in (4,):
        for i in range(4):
            pend.append(f'v_mov_b64 {v(WA[bb]+2*i,2)}, 0')
    def fold(beta):
        b = WA[beta]
        T0, T1 = b, b + 4
        o = OUT + 2 * (beta & 1)
        ops = [f'v_pk_add_f32 {v(T0,2)}, {v(T0,2)}, {v(T0+2,2)}',
               f'v_pk_add_f32 {v(T1,2)}, {v(T1,2)}, {v(T1+2,2)}',
               f'v_cvt_pk_bf16_f32 {v(o)}, {v(T0)}, {v(T1)}',
               f'v_cvt_pk_bf16_f32 {v(o+1)}, {v(T0+1)}, {v(T1+1)}',
               f'v_bfi_b32 {v(o)}, 1, {s(S_TAG)}, {v(o)}']
        if beta in (1, 3, 4):
            ops.append(('st', beta))
        return ops
    def drain_ops(n):
        for _ in range(n):
            if not pend:
                return
            o = pend.pop(0)
            if isinstance(o, tuple):
                beta = o[1]
                if beta < 4:
                    VM.issue(f'buffer_store_dwordx4 {v(OUT,4)}, {v(V_L16)}, {srd}, {s(S_PS)} offen offset:{(beta>>1)*1024}{st}')
                else:
                    VM.issue(f'buffer_store_dwordx2 {v(OUT,2)}, {v(V_T)}, {srd}, {s(S_PS)} offen offset:2048{st}')
            else:
                A(o)
    done = {}
    folded = set()
    for n_, f in enumerate(order):
        beta, kap, pi = (f - 60) // 4, ((f - 60) >> 1) & 1, f & 1
        if beta == 4 and done.get(4, 0) == 0:
            while any('v_mov_b64' in o for o in pend if isinstance(o, str)):
                drain_ops(1)
        LG.wait(o0 if kap == 0 else o1)
        smf(WA[beta] + 4 * pi, V_A + 4 * kap, f)
        done[beta] = done.get(beta, 0) + 1
        done[('t', beta)] = n_
        if f in LDSF and wo_lds:
            lds_fetch(wo_lds.pop(0))
        if n_ == 1:
            A(f's_add_u32 {s(S_KV2)}, {s(S_KV)}, 1024')
            VM.issue(f'buffer_load_dwordx4 {v(V_KXS)}, {srd}, {s(S_KV)} offen sc1{nt} lds')
        if n_ == 3:
            VM.issue(f'buffer_load_dwordx4 {v(V_KXS)}, {srd}, {s(S_KV2)} offen offset:1024 sc1{nt} lds')
        if n_ == 0:
            A(f'v_lshrrev_b32 {v(V_T)}, 1, {v(V_L16)}')
        drain_ops(2 if n_ % 2 == 1 else 1)
        for bb in range(5):
            if bb not in folded and done.get(bb, 0) == 4 and n_ >= done[('t', bb)] + 2:
                pend.extend(fold(bb)); folded.add(bb)
        if n_ % 4 == 3:
            stamp(f'w{n_//4}')
    drain_ops(100)
    for bb in range(5):
        if bb not in folded:
            pend.extend(fold(bb)); folded.add(bb)
    drain_ops(100)
    stamp('wo')
    for f in R1A:
        stream1(f)
    Lng = A.newlabel('CH_NG')
    Lng2 = A.newlabel('CH_NG2')
    A(f's_cmp_eq_u32 {s(S_HASG)}, 0')
    A(f's_cbranch_scc1 {Lng}')
    G = V_ACC
    SEL = V_A
    D = V_A + 4
    A(f'v_mov_b64 {v(SEL,2)}, 0')
    A(f'v_mov_b64 {v(SEL+2,2)}, 0')
    for d in range(4):
        for rr in range(2):
            mask = 0x00010001 << (4 * d + rr)
            A(f's_mov_b32 exec_lo, {mask:#x}')
            A(f's_mov_b32 exec_hi, {mask:#x}')
            A(f'v_mov_b32 {v(SEL+d)}, {"0x3f80" if rr == 0 else "1.0"}')
    A('s_mov_b64 exec, -1')
    stamp('gs')
    Lg = A.newlabel('CH_G'); Lgo = A.newlabel('CH_GO')
    A(f's_mov_b32 {s(S_SPIN)}, 0')
    A.label(Lg)
    for i in range(4):
        A(f'buffer_load_dwordx4 {v(G+4*i,4)}, {v(V_GA)}, {srd}, {s(S_PG+i)} offen sc1')
    c0 = V_SP
    for i in range(4):
        A(f's_waitcnt vmcnt({3-i})')
        if i == 0:
            stamp('g0')
        b = G + 4 * i
        A(f'v_mfma_f32_16x16x32_bf16 {v(D,4)}, {v(SEL,4)}, {v(b,4)}, {"0" if i == 0 else v(D,4)}')
        tt = 0
        for idx in range(8):
            a_, b_, c_ = (idx >> 2) & 1, (idx >> 1) & 1, idx & 1
            if (a_ ^ c_) | (b_ ^ c_):
                tt |= 1 << idx
        A(f'v_bitop3_b32 {v(c0+i)}, {v(b)}, {v(b+2)}, {s(S_TAG)} bitop3:{tt:#x}')
    A(f'v_or3_b32 {v(c0)}, {v(c0)}, {v(c0+1)}, {v(c0+2)}')
    A(f'v_bitop3_b32 {v(c0)}, {v(c0)}, {v(c0+3)}, 1 bitop3:0xa8')
    A(f'v_cmp_ne_u32 vcc, 0, {v(c0)}')
    A(f's_cbranch_vccz {Lgo}')
    A(f's_add_u32 {s(S_SPIN)}, {s(S_SPIN)}, 1')
    A(f's_cmp_lt_u32 {s(S_SPIN)}, {SPIN_LIMIT}')
    A(f's_cbranch_scc1 {Lg}')
    A(f's_branch {Lfail}')
    A.label(Lgo)
    stamp('gok')
    A('s_nop 3')
    A(f'v_add_f32_dpp {v(D)}, {v(D)}, {v(D)} row_ror:8 row_mask:0xf bank_mask:0xf')
    A(f'v_add_f32_dpp {v(D+1)}, {v(D+1)}, {v(D+1)} row_ror:8 row_mask:0xf bank_mask:0xf')
    A(f'v_cvt_pk_bf16_f32 {v(D)}, {v(D)}, {v(D+1)}')
    A(f'v_min_u32 {v(D)}, -2, {v(D)}')
    A(f's_mov_b64 exec, {s(S_MM,2)}')
    A(f'buffer_store_dword {v(D)}, {v(V_MS)}, {srd}, {s(S_MB1)} offen{st}')
    A('s_mov_b64 exec, -1')
    A.label(Lng)
    for f in R1B:
        stream1(f)
    stamp('end')
    stamp_flush()
    A(f'''
    s_mov_b32 {s(S_T0)}, {s(S_MB0)}
    s_mov_b32 {s(S_MB0)}, {s(S_MB1)}
    s_mov_b32 {s(S_MB1)}, {s(S_MB2)}
    s_mov_b32 {s(S_MB2)}, {s(S_T0)}
    s_add_u32 {s(S_KVC)}, {s(S_KV)}, {s(S_VXO)}
    s_add_u32 {s(S_KV)}, {s(S_KV)}, {KVB}
    s_add_u32 {s(S_KMV)}, {s(S_KMV)}, {H*4096}
    s_add_u32 {s(S_FKM)}, {s(S_FKM)}, 512
    s_add_u32 {s(S_TS)}, {s(S_TS)}, 64
    s_xor_b32 {s(S_TAG)}, {s(S_TAG)}, 1
    s_add_u32 {s(S_STEP)}, {s(S_STEP)}, 1
    s_cmp_lt_u32 {s(S_STEP)}, {nsteps}
    s_cbranch_scc1 {Lstep}
    ''')
    A('s_waitcnt vmcnt(0)')
    A('s_mov_b64 exec, 1')
    A(f'buffer_store_dword {v(V_IDX)}, off, {srd}, {s(S_FKM)} sc1')
    A('s_endpgm')

BASE = ['top','mok','b1','qk','b2','s','sm','ow','b3','wo','gs','g0','gok','end']
```

```python
H, DH, DM, NSEG, SEG, MEM, DFF = 32, 128, 640, 64, 32, 8, 1728
off = 0
def alloc(n, align=4096):
    global off
    off = (off + align - 1) // align * align
    o = off
    off += n
    return o
WQ_OFF = alloc(64 * 2 * 40 * 1024)
WK_OFF = alloc(64 * 2 * 40 * 1024)
WV_OFF = alloc(64 * 2 * 40 * 1024)
WO_OFF = alloc(10 * 2 * 256 * 1024)
W1_OFF = alloc(28 * 2 * 40 * 1024)
W2_OFF = alloc(10 * 2 * 108 * 1024)
KVB = H * 16384
KV_OFF = alloc((2 * NSEG + 2) * KVB)
OF_SZ = 262144
OF_OFF = alloc(2 * NSEG * OF_SZ)
HF_SZ = 216 * 512
HF_OFF = alloc(2 * NSEG * HF_SZ)
XF_SZ = 80 * 512
XF_OFF = alloc(4 * NSEG * XF_SZ)
MB_SZ = 10240
MB_OFF = alloc(2 * 3 * MB_SZ)
PB_SZ = 10240
PB_OFF = alloc(2 * H * PB_SZ)
KMV_OFF = alloc(2 * NSEG * H * 4096)
FL_KINDS = dict(KV=0, KM=1, O=2, X1=3, HH=4, X2=5)
FL_BYTES = 6 * 2 * NSEG * 512
FL_OFF = alloc(FL_BYTES + 4096)
def FL(kind, L, s):
    return FL_OFF + ((FL_KINDS[kind] * 2 + L) * NSEG + s) * 512
TS_OFF = alloc(4 << 20)
STAGE_OFF = alloc(34 << 20)
WS_USED = off
assert WS_USED <= 268435456, WS_USED
SPIN_LIMIT = 200000
```

```python
from asmgen import *
from layout import *

MATS = [(16, 4096, 64, 40, WQ_OFF, 640*4096*2), (24, 4096, 64, 40, WK_OFF, 640*4096*2), (32, 4096, 64, 40, WV_OFF, 640*4096*2),
        (40, 640, 10, 256, WO_OFF, 4096*640*2), (64, 1728, 27, 40, W1_OFF, 640*1728*2), (72, 640, 10, 108, W2_OFF, 1728*640*2)]
NT = [nb * kk // 4 for (_, _, nb, kk, _, _) in MATS]
W_WAVES = sum(NT)
W_WGS = W_WAVES // 4
ZERO = [(FL_OFF, FL_BYTES), (PB_OFF, 2 * H * PB_SZ)]
Z_WGS = [n // 16384 for _, n in ZERO]
assert all(n % 16384 == 0 for _, n in ZERO)
X_WGS = 64
PREP_WGS = W_WGS + sum(Z_WGS) + 1 + X_WGS

def gen_prep(A):
    name = 'prep_kernel'
    A.raw(kernel_header(name))
    A(f'''
    s_load_dwordx2 s[4:5], s[0:1], 96
    v_lshrrev_b32 v1, 6, v0
    v_and_b32 v2, 63, v0
    s_mov_b32 s6, 0x10000000
    s_mov_b32 s7, 0x00020000
    v_readfirstlane_b32 s9, v1
    s_cmp_ge_u32 s2, {W_WGS}
    s_cbranch_scc1 PR_INIT
    s_lshl_b32 s8, s2, 2
    s_add_u32 s8, s8, s9
    ''')
    base = 0
    for i, (ka, N, NB, KK, dst, nbytes) in enumerate(MATS):
        nxt = f'PR_M{i+1}'
        A.label(f'PR_M{i}')
        if i < len(MATS) - 1:
            A(f's_cmp_ge_u32 s8, {base + NT[i]}')
            A(f's_cbranch_scc1 {nxt}')
        magic = -(-65536 // NB)
        A(f'''
        s_load_dwordx2 s[12:13], s[0:1], {ka}
        s_sub_u32 s8, s8, {base}
        s_mov_b32 s14, {nbytes}
        s_mov_b32 s16, {2*N}
        s_mov_b32 s17, {NB}
        s_mov_b32 s18, {KK}
        s_mov_b32 s19, {dst}
        s_mov_b32 s20, {magic}
        s_branch PR_GO
        ''')
        for t in range(NT[i]):
            assert (t * magic) >> 16 == t // NB
        base += NT[i]
    A.label('PR_GO')
    A(f'''
    s_mov_b32 s15, 0x00020000
    s_mul_i32 s21, s8, s20
    s_lshr_b32 s21, s21, 16            ; kg
    s_mul_i32 s22, s21, s17
    s_sub_u32 s22, s8, s22             ; nblk
    v_and_b32 v3, 31, v2
    v_lshrrev_b32 v4, 5, v2
    v_lshlrev_b32 v4, 3, v4
    v_mul_lo_u32 v4, v4, s16
    v_lshl_add_u32 v3, v3, 2, v4       ; voffset
    s_lshl_b32 s23, s21, 6
    s_mul_i32 s23, s23, s16
    s_lshl_b32 s24, s22, 7
    s_add_u32 s23, s23, s24
    s_lshl_b32 s25, s16, 3             ; 8 rows
    s_waitcnt lgkmcnt(0)
    ''')
    for u in range(4):
        for j in range(8):
            A(f'buffer_load_dword v{8+u*8+j}, v3, s[12:15], s23 offen')
            A('s_add_u32 s23, s23, s16')
        A('s_add_u32 s23, s23, s25')
    A(f'''
    s_mul_i32 s26, s22, s18
    s_lshl_b32 s26, s26, 1
    s_lshl_b32 s27, s21, 2
    s_add_u32 s26, s26, s27
    s_lshl_b32 s26, s26, 10
    s_add_u32 s26, s26, s19
    s_lshl_b32 s27, s18, 10
    s_add_u32 s27, s27, s26
    v_lshlrev_b32 v5, 4, v2
    s_mov_b32 s28, 0x05040100
    s_mov_b32 s29, 0x07060302
    ''')
    for u in range(4):
        A(f's_waitcnt vmcnt({(3-u)*8 + 2*u})')
        b = 8 + u * 8
        o = 40 + u * 8
        for i in range(4):
            A(f'v_perm_b32 v{o+i}, v{b+2*i+1}, v{b+2*i}, s28')
            A(f'v_perm_b32 v{o+4+i}, v{b+2*i+1}, v{b+2*i}, s29')
        A(f'buffer_store_dwordx4 v[{o}:{o+3}], v5, s[4:7], s26 offen offset:{u*1024}')
        A(f'buffer_store_dwordx4 v[{o+4}:{o+7}], v5, s[4:7], s27 offen offset:{u*1024}')
    A('s_endpgm')
    A.label('PR_INIT')
    A(f'''
    s_sub_u32 s8, s2, {W_WGS}
    v_lshlrev_b32 v5, 4, v0
    v_mov_b32 v8, 0
    v_mov_b32 v9, 0
    v_mov_b32 v10, 0
    v_mov_b32 v11, 0
    s_cmp_ge_u32 s8, {sum(Z_WGS)}
    s_cbranch_scc1 PR_MB
    s_lshl_b32 s10, s8, 14
    s_add_u32 s11, s10, {ZERO[0][0]}
    s_add_u32 s12, s10, {ZERO[1][0] - ZERO[0][1]}
    s_cmp_lt_u32 s8, {Z_WGS[0]}
    s_cselect_b32 s10, s11, s12
    s_waitcnt lgkmcnt(0)
    ''')
    for i in range(4):
        A(f'buffer_store_dwordx4 v[8:11], v5, s[4:7], s10 offen')
        A('s_add_u32 s10, s10, 4096')
    A('s_endpgm')
    A.label('PR_MB')
    A(f'''
    s_cmp_gt_u32 s8, {sum(Z_WGS)}
    s_cbranch_scc1 PR_X
    s_load_dwordx2 s[12:13], s[0:1], 8
    s_mov_b32 s14, 10240
    s_mov_b32 s15, 0x00020000
    v_mov_b32 v8, -1
    v_mov_b32 v9, -1
    v_mov_b32 v10, -1
    v_mov_b32 v11, -1
    s_waitcnt lgkmcnt(0)
    ''')
    for c in range(2):
        for i in range(5):
            A(f's_mov_b32 s10, {MB_OFF + c*3*MB_SZ + MB_SZ + i*4096}')
            A(f'buffer_store_dwordx4 v[8:11], v5, s[4:7], s10 offen')
    A('''
    v_bfe_u32 v12, v0, 4, 2
    v_lshlrev_b32 v12, 1, v12
    v_bfe_u32 v13, v0, 2, 1
    v_add_u32 v12, v12, v13
    v_mul_u32_u24 v12, 1280, v12
    v_lshrrev_b32 v13, 6, v0
    v_lshl_add_u32 v12, v13, 5, v12
    v_and_b32 v13, 3, v0
    v_lshl_add_u32 v12, v13, 3, v12
    v_bfe_u32 v13, v0, 3, 1
    v_lshl_add_u32 v12, v13, 2, v12
    v_lshlrev_b32 v14, 2, v0
    ''')
    for kap in range(10):
        A(f'buffer_load_dword v{16+kap}, v12, s[12:15], 0 offen offset:{kap*128}')
    A('s_waitcnt vmcnt(0)')
    for kap in range(10):
        A(f'v_min_u32 v{16+kap}, -2, v{16+kap}')
    for c in range(2):
        for kap in range(10):
            A(f's_mov_b32 s10, {MB_OFF + c*3*MB_SZ + kap*1024}')
            A(f'buffer_store_dword v{16+kap}, v14, s[4:7], s10 offen')
    A('s_endpgm')
    A.label('PR_X')
    A(f'''
    s_sub_u32 s8, s8, {sum(Z_WGS)+1}
    s_cmp_ge_u32 s8, {X_WGS}
    s_cbranch_scc1 PR_END
    s_load_dwordx2 s[12:13], s[0:1], 0
    s_mov_b32 s14, {2048*640*2}
    s_mov_b32 s15, 0x00020000
    v_and_b32 v3, 31, v2
    v_mul_u32_u24 v3, 1280, v3
    v_lshrrev_b32 v4, 5, v2
    v_lshl_add_u32 v3, v4, 4, v3
    v_lshlrev_b32 v5, 4, v2
    s_mul_i32 s10, s8, {XF_SZ}
    s_mul_i32 s11, s9, 320
    s_add_u32 s11, s11, s10
    s_mul_i32 s16, s9, 10240
    s_add_u32 s10, s10, s16
    s_add_u32 s10, s10, {XF_OFF}
    s_waitcnt lgkmcnt(0)
    ''')
    for i in range(10):
        A(f'buffer_load_dwordx4 v[{8+4*i}:{11+4*i}], v3, s[12:15], s11 offen offset:{i*32}')
    for i in range(10):
        A(f's_waitcnt vmcnt(9)')
        A(f'buffer_store_dwordx4 v[{8+4*i}:{11+4*i}], v5, s[4:7], s10 offen')
        A('s_add_u32 s10, s10, 1024')
    A.label('PR_END')
    A('s_endpgm')
    A.raw(kernel_desc(name, vgpr=72, sgpr=40, accum=72))
    return f'; @launch kernel={name} grid=({PREP_WGS},1,1) block=(256,1,1) lds=0'
```

```python
from asmgen import *
from layout import *

L_XB = [0, 40960]
L_ST = 81920
L_TB = 83968
L_SX = 86016

V_L16, V_BR, V_SR, V_SW, V_SRD_, V_T0, V_T1, V_FS, V_FS2, V_FS3, V_L4, V_KMA, V_VMA, V_SXW, V_SXR = range(1, 16)
V_B = 16
V_SB = 32
V_SS = 36
V_SQ = 38
V_U = 40
V_X = 44
V_ACC = 128
V_CS = 160
def wreg(t, kk):
    i = (t * 40 + kk) * 4
    return 256 + i if i < 256 else 192 + (i - 256)

S_I, S_W, S_S, S_L = 8, 9, 10, 11
S_XIN = 12
S_FIN = 13
S_FM = 14
S_OUT = 16
S_FOUT = 17
S_PRE, S_PEND = 18, 19
S_M0B = 20
S_T0, S_T1, S_T2 = 21, 22, 23
S_SPIN = 24
S_ACT = 25
S_KVB, S_KMB, S_FKV, S_FKM = 26, 27, 28, 29
S_KVL, S_KML = 30, 31
S_SC = 32
S_FPREV = 34
S_END = 35
S_STR = 36

def gen_t1(A, kind, Lfail, s0=0, sstep=1):
    srd = 's[4:7]'
    P = kind
    A(f'''
    v_lshrrev_b32 v2, 6, v0
    v_and_b32 v0, 63, v0
    v_readfirstlane_b32 {s(S_W)}, v2
    v_lshlrev_b32 {v(V_L16)}, 4, v0
    v_lshlrev_b32 {v(V_L4)}, 2, v0
    v_mov_b32 {v(V_BR)}, {v(V_L16)}
    s_lshl_b32 {s(S_T0)}, {s(S_W)}, 10
    v_add_u32 {v(V_SR)}, {s(S_T0)}, {v(V_L16)}
    v_and_b32 {v(V_T0)}, 31, v0
    v_lshrrev_b32 {v(V_T1)}, 5, v0
    v_lshlrev_b32 {v(V_SRD_)}, 6, {v(V_T0)}
    v_add_u32 {v(V_SRD_)}, {L_ST}, {v(V_SRD_)}
    s_lshl_b32 {s(S_T0)}, {s(S_W)}, 4
    v_lshl_add_u32 {v(V_SW)}, {v(V_T1)}, 3, {v(V_SRD_)}
    v_add_u32 {v(V_SW)}, {s(S_T0)}, {v(V_SW)}
    s_mov_b32 {s(S_S)}, 0
    s_mov_b32 {s(S_PRE)}, 0
    s_mov_b32 {s(S_PEND)}, 0
    s_mov_b32 {s(S_ACT)}, 1
    s_mul_i32 {s(S_M0B)}, {s(S_W)}, 10240
    s_lshl_b32 {s(S_T2)}, {s(S_I)}, 2
    s_add_u32 {s(S_T2)}, {s(S_T2)}, {s(S_W)}
    ''')
    if kind == 'F1':
        A(f'''
        s_lshl_b32 {s(S_T0)}, {s(S_L)}, 1
        s_add_u32 {s(S_T0)}, {s(S_T0)}, 1
        s_mul_i32 {s(S_XIN)}, {s(S_T0)}, {NSEG*XF_SZ}
        s_mul_i32 {s(S_FIN)}, {s(S_L)}, {NSEG*512}
        s_add_u32 {s(S_FIN)}, {s(S_FIN)}, {FL('X1',0,0)}
        s_mov_b32 {s(S_FM)}, -1
        s_mov_b32 {s(S_FM+1)}, 0xff
        s_mul_i32 {s(S_OUT)}, {s(S_L)}, {NSEG*HF_SZ}
        s_lshl_b32 {s(S_T0)}, {s(S_T2)}, 12
        s_add_u32 {s(S_OUT)}, {s(S_OUT)}, {s(S_T0)}
        s_add_u32 {s(S_OUT)}, {s(S_OUT)}, {HF_OFF}
        s_mul_i32 {s(S_FOUT)}, {s(S_L)}, {NSEG*512}
        s_add_u32 {s(S_FOUT)}, {s(S_FOUT)}, {FL('HH',0,0)}
        s_cmp_lt_u32 {s(S_T2)}, 27
        s_cselect_b32 {s(S_ACT)}, 1, 0
        s_mul_i32 {s(S_T1)}, {s(S_T2)}, {80*1024}
        s_add_u32 {s(S_T1)}, {s(S_T1)}, {W1_OFF}
        ''')
        out_stride = HF_SZ
    else:
        A(f'''
        s_mul_i32 {s(S_XIN)}, {s(S_L)}, {2*NSEG*XF_SZ}
        s_mov_b32 {s(S_FIN)}, {FL('X2',0,0)}
        s_cmp_eq_u32 {s(S_L)}, 0
        s_cselect_b32 {s(S_FM)}, 0, -1
        s_cselect_b32 {s(S_FM+1)}, 0, 0xff
        s_mul_i32 {s(S_FOUT)}, {s(S_L)}, {NSEG*512}
        ''')
        if kind == 'KV':
            A(f'''
            s_mul_i32 {s(S_OUT)}, {s(S_L)}, {NSEG*KVB}
            s_lshl_b32 {s(S_T0)}, {s(S_T2)}, 12
            s_add_u32 {s(S_OUT)}, {s(S_OUT)}, {s(S_T0)}
            s_add_u32 {s(S_OUT)}, {s(S_OUT)}, {KV_OFF}
            s_add_u32 {s(S_FOUT)}, {s(S_FOUT)}, {FL('KV',0,0)}
            s_lshl_b32 {s(S_T0)}, {s(S_I)}, 1
            s_and_b32 {s(S_T1)}, {s(S_W)}, 1
            s_add_u32 {s(S_T0)}, {s(S_T0)}, {s(S_T1)}
            s_mul_i32 {s(S_T1)}, {s(S_T0)}, {80*1024}
            s_cmp_lt_u32 {s(S_W)}, 2
            s_cselect_b32 {s(S_T0)}, 0, {WV_OFF-WK_OFF}
            s_add_u32 {s(S_T1)}, {s(S_T1)}, {s(S_T0)}
            s_add_u32 {s(S_T1)}, {s(S_T1)}, {WK_OFF}
            ''')
            out_stride = KVB
        else:
            A(f'''
            s_add_u32 {s(S_FKV)}, {s(S_FOUT)}, {FL('KV',0,0)}
            s_add_u32 {s(S_FKM)}, {s(S_FOUT)}, {FL('KM',0,0)}
            s_lshr_b32 {s(S_T0)}, {s(S_T2)}, 1
            s_lshl_b32 {s(S_T1)}, {s(S_T0)}, 4
            s_add_u32 {s(S_FKV)}, {s(S_FKV)}, {s(S_T1)}
            s_add_u32 {s(S_FKM)}, {s(S_FKM)}, {s(S_T1)}
            s_mul_i32 {s(S_KVB)}, {s(S_L)}, {NSEG*KVB}
            s_lshl_b32 {s(S_T1)}, {s(S_T0)}, 14
            s_add_u32 {s(S_KVB)}, {s(S_KVB)}, {s(S_T1)}
            s_lshr_b32 {s(S_KMB)}, {s(S_KVB)}, 2
            s_and_b32 {s(S_T1)}, {s(S_W)}, 1
            s_lshl_b32 {s(S_T0)}, {s(S_T1)}, 12
            s_add_u32 {s(S_KVB)}, {s(S_KVB)}, {s(S_T0)}
            s_add_u32 {s(S_KVB)}, {s(S_KVB)}, {KV_OFF}
            s_lshl_b32 {s(S_T0)}, {s(S_T1)}, 11
            s_add_u32 {s(S_KMB)}, {s(S_KMB)}, {s(S_T0)}
            s_add_u32 {s(S_KMB)}, {s(S_KMB)}, {KMV_OFF}
            s_mul_i32 {s(S_OUT)}, {s(S_L)}, {NSEG*OF_SZ}
            s_lshl_b32 {s(S_T0)}, {s(S_T2)}, 12
            s_add_u32 {s(S_OUT)}, {s(S_OUT)}, {s(S_T0)}
            s_add_u32 {s(S_OUT)}, {s(S_OUT)}, {OF_OFF}
            s_add_u32 {s(S_FOUT)}, {s(S_FOUT)}, {FL('O',0,0)}
            s_mul_i32 {s(S_T1)}, {s(S_T2)}, {80*1024}
            s_add_u32 {s(S_T1)}, {s(S_T1)}, {WQ_OFF}
            s_mov_b32 {s(S_SC)}, 0x3e0293ee
            s_mov_b32 {s(S_SC+1)}, 0x3e0293ee
            ''')
            out_stride = OF_SZ
    A(f'''
    s_add_u32 {s(S_XIN)}, {s(S_XIN)}, {XF_OFF}
    s_add_u32 {s(S_XIN)}, {s(S_XIN)}, {s(S_M0B)}
    s_lshl_b32 {s(S_T0)}, {s(S_T2)}, 2
    s_add_u32 {s(S_FOUT)}, {s(S_FOUT)}, {s(S_T0)}
    ''')
    VM = Cnt(A, 'vmcnt', 63)
    for i in range(80):
        if i % 4 == 0 and i:
            A(f's_add_u32 {s(S_T1)}, {s(S_T1)}, 4096')
        VM.issue(f'buffer_load_dwordx4 {r(wreg(i//40, i%40),4)}, {v(V_L16)}, {srd}, {s(S_T1)} offen offset:{(i%4)*1024}')
        if i >= 40:
            VM.wait(VM.issued - 40)
    for i in range(4):
        A(f'v_mov_b32 {v(V_B+i)}, 0x3f803f80')
    if kind == 'QA':
        qa_consts(A)
    A(f'v_mov_b32 {v(V_T1)}, 1')
    VM.drain()

    forms = ['T', 'V'] if kind == 'KV' else ['T']
    if kind == 'KV':
        LV = A.newlabel('T1_VW')
        A(f's_cmp_ge_u32 {s(S_W)}, 2')
        A(f's_cbranch_scc1 {LV}')
    for form in forms:
        if form == 'V':
            A.label(LV)
            A.forget()
        body(A, kind, form, Lfail, out_stride)

Q_, KX_, VX_, KM_, VM_, BI_ = V_X, V_X + 16, V_X + 32, V_X + 48, V_X + 64, V_X + 68

def qa_consts(A):
    A(f'v_lshlrev_b32 {v(V_U)}, 2, {v(V_T1)}')
    A(f'v_sub_u32 {v(V_U)}, {v(V_T0)}, {v(V_U)}')
    A(f'v_mov_b32 {v(V_U+1)}, 0xf149f2ca')
    for rr in range(16):
        A(f'v_cmp_le_i32 vcc, {8*(rr>>2)+(rr&3)}, {v(V_U)}')
        A(f'v_cndmask_b32 {v(BI_+rr)}, {v(V_U+1)}, 0, vcc')
    A(f'''
    v_bfe_u32 {v(V_U)}, {v(V_T0)}, 1, 2
    v_lshlrev_b32 {v(V_KMA)}, 8, {v(V_U)}
    v_and_b32 {v(V_U)}, 1, {v(V_T0)}
    v_lshl_add_u32 {v(V_KMA)}, {v(V_U)}, 2, {v(V_KMA)}
    v_lshl_add_u32 {v(V_KMA)}, {v(V_T1)}, 6, {v(V_KMA)}
    v_lshrrev_b32 {v(V_U)}, 4, {v(V_T0)}
    v_lshlrev_b32 {v(V_VMA)}, 10, {v(V_U)}
    v_and_b32 {v(V_U)}, 15, {v(V_T0)}
    v_lshl_add_u32 {v(V_VMA)}, {v(V_U)}, 4, {v(V_VMA)}
    v_lshl_add_u32 {v(V_VMA)}, {v(V_T1)}, 9, {v(V_VMA)}
    s_mul_i32 {s(S_T0)}, {s(S_W)}, 5120
    s_add_u32 {s(S_T0)}, {s(S_T0)}, {L_SX}
    v_add_u32 {v(V_SXW)}, {s(S_T0)}, {v(V_L16)}
    s_xor_b32 {s(S_T0)}, {s(S_W)}, 1
    s_mul_i32 {s(S_T0)}, {s(S_T0)}, 5120
    s_add_u32 {s(S_T0)}, {s(S_T0)}, {L_SX}
    v_add_u32 {v(V_SXR)}, {s(S_T0)}, {v(V_L16)}
    ''')

def poll_block(A, saddr, mask, vreg, Lfail):
    Lp, Lo = A.newlabel('PL'), A.newlabel('PO')
    A(f's_mov_b32 {s(S_SPIN)}, 0')
    A(f's_mov_b64 exec, {mask}')
    A.label(Lp)
    A(f'buffer_load_dword {v(vreg)}, {v(V_L4)}, s[4:7], {s(saddr)} offen sc1')
    A('s_waitcnt vmcnt(0)')
    A(f'v_cmp_eq_u32 vcc, 0, {v(vreg)}')
    A(f's_cbranch_vccz {Lo}')
    A('s_sleep 1')
    A(f's_add_u32 {s(S_SPIN)}, {s(S_SPIN)}, 1')
    A(f's_cmp_lt_u32 {s(S_SPIN)}, {SPIN_LIMIT}')
    A(f's_cbranch_scc1 {Lp}')
    A(f's_branch {Lfail}')
    A.label(Lo)
    A('s_mov_b64 exec, -1')

def body(A, kind, form, Lfail, out_stride):
    srd = 's[4:7]'
    LG = Cnt(A, 'lgkmcnt', 15)
    def mf(t, kk, breg, first, dst=None):
        acc = v((V_ACC if dst is None else dst) + 16 * t, 16)
        w = r(wreg(t, kk), 4)
        a_, b_ = (w, v(breg, 4)) if form == 'T' else (v(breg, 4), w)
        A(f'v_mfma_f32_32x32x16_bf16 {acc}, {a_}, {b_}, {"0" if first else acc}')
    for kk in range(40):
        for t in range(2):
            mf(t, kk, V_B, kk == 0, dst=V_CS)
    def dma():
        A(f's_mov_b32 m0, {s(S_M0B)}')
        A(f's_add_u32 {s(S_T0)}, {s(S_XIN)}, 4096')
        for i in range(4):
            A(f'buffer_load_dwordx4 {v(V_L16)}, {srd}, {s(S_XIN)} offen offset:{i*1024} sc1 lds')
        A(f's_add_u32 m0, {s(S_M0B)}, 4096')
        A(f's_add_u32 {s(S_T1)}, {s(S_XIN)}, 8192')
        for i in range(4):
            A(f'buffer_load_dwordx4 {v(V_L16)}, {srd}, {s(S_T0)} offen offset:{i*1024} sc1 lds')
        A(f's_add_u32 m0, {s(S_M0B)}, 8192')
        A(f's_mov_b32 {s(S_PRE)}, 1')
        for i in range(2):
            A(f'buffer_load_dwordx4 {v(V_L16)}, {srd}, {s(S_T1)} offen offset:{i*1024} sc1 lds')
    def flush_flag():
        L = A.newlabel('NF')
        A(f's_cmp_eq_u32 {s(S_PEND)}, 0')
        A(f's_cbranch_scc1 {L}')
        A('s_mov_b64 exec, 1')
        A(f'buffer_store_dword {v(V_T1)}, off, {srd}, {s(S_FPREV)} sc1')
        A('s_mov_b64 exec, -1')
        A(f's_mov_b32 {s(S_PEND)}, 0')
        A.label(L)
    def kv_loads():
        for i in range(4):
            A(f'buffer_load_dwordx4 {v(KX_+4*i,4)}, {v(V_L16)}, {srd}, {s(S_KVB)} offen offset:{i*1024} sc1')
        A(f's_add_u32 {s(S_T0)}, {s(S_KVB)}, 8192')
        for i in range(4):
            A(f'buffer_load_dwordx4 {v(VX_+4*i,4)}, {v(V_L16)}, {srd}, {s(S_T0)} offen offset:{i*1024} sc1')
        A(f's_mov_b32 {s(S_KVL)}, 1')
    def km_loads():
        for ks in range(4):
            for i in range(4):
                A(f'buffer_load_dword {v(KM_+4*ks+i)}, {v(V_KMA)}, {srd}, {s(S_KMB)} offen offset:{(ks>>1)*1024 + (ks&1)*128 + i*16} sc1')
        A(f'buffer_load_dwordx2 {v(VM_,2)}, {v(V_VMA)}, {srd}, {s(S_KMB)} offen offset:8 sc1')
        A(f'buffer_load_dwordx2 {v(VM_+2,2)}, {v(V_VMA)}, {srd}, {s(S_KMB)} offen offset:{256+8} sc1')
        A(f's_mov_b32 {s(S_KML)}, 1')
    def sample():
        A(f's_mov_b64 exec, {s(S_FM,2)}')
        A(f'buffer_load_dword {v(V_FS)}, {v(V_L4)}, {srd}, {s(S_FIN)} offen sc1')
        if kind == 'QA':
            A('s_mov_b64 exec, 15')
            A(f'buffer_load_dword {v(V_FS2)}, {v(V_L4)}, {srd}, {s(S_FKV)} offen sc1')
            A(f'buffer_load_dword {v(V_FS3)}, {v(V_L4)}, {srd}, {s(S_FKM)} offen sc1')
        A('s_mov_b64 exec, -1')
    def check():
        A('s_waitcnt vmcnt(0)')
        flush_flag()
        if kind == 'QA':
            for (st, vs, fn) in ((S_KVL, V_FS2, kv_loads), (S_KML, V_FS3, km_loads)):
                L = A.newlabel('CK')
                A(f's_cmp_lg_u32 {s(st)}, 0')
                A(f's_cbranch_scc1 {L}')
                A(f'v_cmp_eq_u32 vcc, 0, {v(vs)}')
                A(f's_and_b32 {s(S_T0)}, vcc_lo, 15')
                A(f's_cbranch_scc1 {L}')
                fn()
                A.label(L)
        L = A.newlabel('CK')
        A(f's_cmp_lg_u32 {s(S_PRE)}, 0')
        A(f's_cbranch_scc1 {L}')
        A(f's_cmp_ge_u32 {s(S_S)}, {NSEG-1}')
        A(f's_cbranch_scc1 {L}')
        A(f'v_cmp_eq_u32 vcc, 0, {v(V_FS)}')
        A(f's_and_b64 vcc, vcc, {s(S_FM,2)}')
        A(f's_cbranch_scc1 {L}')
        dma()
        A.label(L)

    Litem = A.newlabel('T1_ITEM')
    Lhave = A.newlabel('T1_HAVE'); Lgo = A.newlabel('T1_GO')
    A.label(Litem)
    A.forget()
    A(f's_cmp_lg_u32 {s(S_PRE)}, 0')
    A(f's_cbranch_scc1 {Lhave}')
    A('s_waitcnt vmcnt(0)')
    flush_flag()
    poll_block(A, S_FIN, s(S_FM, 2), V_FS, Lfail)
    dma()
    A('s_waitcnt vmcnt(0)')
    A(f's_branch {Lgo}')
    A.label(Lhave)
    A('s_waitcnt vmcnt(4)')
    A.label(Lgo)
    A('s_barrier')
    A(f'''
    s_mov_b32 {s(S_PRE)}, 0
    s_add_u32 {s(S_XIN)}, {s(S_XIN)}, {XF_SZ}
    s_add_u32 {s(S_FIN)}, {s(S_FIN)}, 512
    s_sub_u32 {s(S_T0)}, {s(S_M0B)}, 40960
    s_add_u32 {s(S_T1)}, {s(S_M0B)}, 40960
    s_cmp_ge_u32 {s(S_M0B)}, 40960
    s_cselect_b32 {s(S_M0B)}, {s(S_T0)}, {s(S_T1)}
    s_mov_b32 {s(S_KVL)}, 0
    s_mov_b32 {s(S_KML)}, 0
    ''')
    LG.reset()
    btok = {}
    def bread(kk):
        btok[kk] = LG.issue(f'ds_read_b128 {v(V_B+4*(kk%4),4)}, {v(V_BR)} offset:{kk*1024}')
    stok = {}
    def sread(j):
        stok[j] = LG.issue(f'ds_read_b128 {v(V_SB,4)}, {v(V_SR)} offset:{j*4096}')
    bread(0); bread(1); bread(2); sread(0)
    A(f'v_mov_b64 {v(V_SS,2)}, 0')
    A(f'v_mov_b64 {v(V_SQ,2)}, 0')
    fill = []
    for j in range(10):
        fill.append(('w', j))
        for d in range(4):
            u = V_U + 2 * (d & 1)
            fill.append(f'v_lshlrev_b32 {v(u)}, 16, {v(V_SB+d)}')
            fill.append(f'v_and_b32 {v(u+1)}, 0xffff0000, {v(V_SB+d)}')
            if d == 3 and j < 9:
                fill.append(('r', j + 1))
            fill.append(f'v_pk_add_f32 {v(V_SS,2)}, {v(V_SS,2)}, {v(u,2)}')
            fill.append(f'v_pk_fma_f32 {v(V_SQ,2)}, {v(u,2)}, {v(u,2)}, {v(V_SQ,2)}')
        fill.append(('gap',))
    fill.append(f'v_add_f32 {v(V_U)}, {v(V_SS)}, {v(V_SS+1)}')
    fill.append(f'v_add_f32 {v(V_U+1)}, {v(V_SQ)}, {v(V_SQ+1)}')
    fill.append(('sw',))
    fill.append(('gap',))
    fill.append(('bar',))
    PS = V_X if kind != 'QA' else Q_
    fill.append(('gap',))
    fill.append(('pw',))
    for i in (0, 4, 8, 12):
        fill.append(f'v_pk_add_f32 {v(PS+i,2)}, {v(PS+i,2)}, {v(PS+i+2,2)}')
    fill.append(f'v_pk_add_f32 {v(PS,2)}, {v(PS,2)}, {v(PS+4,2)}')
    fill.append(f'v_pk_add_f32 {v(PS+8,2)}, {v(PS+8,2)}, {v(PS+12,2)}')
    fill.append(f'v_pk_add_f32 {v(PS,2)}, {v(PS,2)}, {v(PS+8,2)}')
    NM, RS = V_SS, V_SQ
    inv = 0x3acccccd
    fill += [f'v_mul_f32 {v(PS)}, {inv:#x}, {v(PS)}',
             f'v_mul_f32 {v(PS+1)}, {inv:#x}, {v(PS+1)}',
             f'v_fma_f32 {v(PS+1)}, -{v(PS)}, {v(PS)}, {v(PS+1)}',
             f'v_max_f32 {v(PS+1)}, 0, {v(PS+1)}',
             f'v_cvt_pk_bf16_f32 {v(PS)}, {v(PS)}, {v(PS+1)}',
             f'v_lshlrev_b32 {v(NM)}, 16, {v(PS)}',
             f'v_and_b32 {v(PS+1)}, 0xffff0000, {v(PS)}',
             f'v_xor_b32 {v(NM)}, 0x80000000, {v(NM)}',
             f'v_add_f32 {v(PS+1)}, 0x3727c5ac, {v(PS+1)}',
             f'v_cvt_pk_bf16_f32 {v(PS+1)}, {v(PS+1)}, {v(PS+1)}',
             f'v_lshlrev_b32 {v(PS+1)}, 16, {v(PS+1)}',
             f'v_sqrt_f32 {v(PS+1)}, {v(PS+1)}',
             f'v_cvt_pk_bf16_f32 {v(PS+1)}, {v(PS+1)}, {v(PS+1)}',
             f'v_lshlrev_b32 {v(PS+1)}, 16, {v(PS+1)}',
             f'v_rcp_f32 {v(RS)}, {v(PS+1)}']
    if form == 'V':
        fill += [f'v_mul_f32 {v(RS+1)}, {v(NM)}, {v(RS)}', ('tw',), ('gap',), ('tr',)]
    toks = {}
    def run_fill(n):
        while n > 0 and fill:
            o = fill.pop(0)
            if isinstance(o, str):
                A(o); n -= 1
            elif o[0] == 'w':
                LG.wait(stok[o[1]])
            elif o[0] == 'r':
                sread(o[1])
            elif o[0] == 'gap':
                return
            elif o[0] == 'sw':
                toks['sw'] = LG.issue(f'ds_write_b64 {v(V_SW)}, {v(V_U,2)}')
            elif o[0] == 'bar':
                LG.wait(toks['sw'])
                A('s_barrier')
                for i in range(4):
                    toks['p'] = LG.issue(f'ds_read_b128 {v(PS+4*i,4)}, {v(V_SRD_)} offset:{i*16}')
            elif o[0] == 'pw':
                LG.wait(toks['p'])
            elif o[0] == 'tw':
                A(f's_lshl_b32 {s(S_T0)}, {s(S_W)}, 8')
                A(f'v_and_b32 {v(V_T0)}, 127, {v(V_L4)}')
                A(f'v_add_u32 {v(V_T0)}, {s(S_T0)}, {v(V_T0)}')
                A(f'v_add_u32 {v(V_T0)}, {L_TB}, {v(V_T0)}')
                toks['tw'] = LG.issue(f'ds_write2_b32 {v(V_T0)}, {v(RS)}, {v(RS+1)} offset0:0 offset1:32')
                A(f'v_lshrrev_b32 {v(V_T0)}, 5, v0')
                A(f'v_lshlrev_b32 {v(V_T0)}, 4, {v(V_T0)}')
                A(f's_add_u32 {s(S_T0)}, {s(S_T0)}, {L_TB}')
                A(f'v_add_u32 {v(V_T0)}, {s(S_T0)}, {v(V_T0)}')
            elif o[0] == 'tr':
                LG.wait(toks['tw'])
                for rg in range(4):
                    LG.issue(f'ds_read_b128 {v(V_X+4*rg,4)}, {v(V_T0)} offset:{rg*32}')
                    toks['tr'] = LG.issue(f'ds_read_b128 {v(V_X+16+4*rg,4)}, {v(V_T0)} offset:{128+rg*32}')
    for kk in range(40):
        LG.wait(btok[kk])
        mf(0, kk, V_B + 4 * (kk % 4), kk == 0)
        run_fill(4)
        mf(1, kk, V_B + 4 * (kk % 4), kk == 0)
        if kk + 3 < 40:
            bread(kk + 3)
        run_fill(4)
        if kk == 0:
            sample()
        if kk == 12:
            check()
        if kk in (16, 32):
            L2 = A.newlabel('SK')
            A(f's_cmp_ge_u32 {s(S_S)}, {NSEG-1}')
            A(f's_cselect_b32 {s(S_T0)}, 1, {s(S_PRE)}')
            if kind == 'QA':
                A(f's_and_b32 {s(S_T0)}, {s(S_T0)}, {s(S_KVL)}')
                A(f's_and_b32 {s(S_T0)}, {s(S_T0)}, {s(S_KML)}')
            A(f's_cmp_lg_u32 {s(S_T0)}, 0')
            A(f's_cbranch_scc1 {L2}')
            if kk == 16:
                sample()
            else:
                check()
            A.label(L2)
    while fill:
        run_fill(100)
    A(f's_cmp_ge_u32 {s(S_M0B)}, 40960')
    A(f's_cselect_b32 {s(S_T0)}, 81920, 0')
    A(f's_sub_u32 {s(S_T0)}, {s(S_T0)}, 40960')
    A(f'v_add_u32 {v(V_BR)}, {s(S_T0)}, {v(V_BR)}')
    A(f'v_add_u32 {v(V_SR)}, {s(S_T0)}, {v(V_SR)}')
    T0, T1 = V_ACC, V_ACC + 16
    PK = Q_ if kind == 'QA' else V_X + 32
    if form == 'T':
        for t in range(2):
            for i in range(0, 16, 2):
                a_ = V_ACC + 16 * t + i
                A(f'v_pk_fma_f32 {v(a_,2)}, {v(V_CS+16*t+i,2)}, {v(NM,2)}, {v(a_,2)} op_sel_hi:[1,0,1]')
                A(f'v_pk_mul_f32 {v(a_,2)}, {v(a_,2)}, {v(RS,2)} op_sel_hi:[1,0]')
        for i in range(16):
            A(f'v_cvt_pk_bf16_f32 {v(PK+i)}, {v(T0+i)}, {v(T1+i)}')
            if kind == 'F1':
                A(f'v_pk_max_i16 {v(PK+i)}, {v(PK+i)}, 0')
    else:
        LG.wait(toks['tr'])
        for t in range(2):
            for i in range(0, 16, 2):
                a_ = V_ACC + 16 * t + i
                A(f'v_pk_mul_f32 {v(a_,2)}, {v(a_,2)}, {v(V_X+i,2)}')
                A(f'v_pk_fma_f32 {v(a_,2)}, {v(V_X+16+i,2)}, {v(V_CS+16*t,2)}, {v(a_,2)}')
                A(f'v_cvt_pk_bf16_f32 {v(PK+8*t+i//2)}, {v(a_)}, {v(a_+1)}')
    if kind == 'QA':
        attention(A, LG, Lfail, kv_loads, km_loads, flush_flag)
    Lns = A.newlabel('T1_NS')
    if kind == 'F1':
        A(f's_cmp_eq_u32 {s(S_ACT)}, 0')
        A(f's_cselect_b32 exec_lo, 0, -1')
        A(f's_cselect_b32 exec_hi, 0, -1')
    for i in range(4):
        A(f'buffer_store_dwordx4 {v(PK+4*i,4)}, {v(V_L16)}, {srd}, {s(S_OUT)} offen offset:{i*1024} sc1')
    A('s_mov_b64 exec, -1')
    A(f'''
    s_mov_b32 {s(S_PEND)}, {s(S_ACT)}
    s_mov_b32 {s(S_FPREV)}, {s(S_FOUT)}
    s_add_u32 {s(S_FOUT)}, {s(S_FOUT)}, 512
    s_add_u32 {s(S_OUT)}, {s(S_OUT)}, {out_stride}
    ''')
    if kind == 'QA':
        A(f'''
        s_add_u32 {s(S_KVB)}, {s(S_KVB)}, {KVB}
        s_add_u32 {s(S_KMB)}, {s(S_KMB)}, {H*4096}
        s_add_u32 {s(S_FKV)}, {s(S_FKV)}, 512
        s_add_u32 {s(S_FKM)}, {s(S_FKM)}, 512
        ''')
    A(f'''
    s_add_u32 {s(S_S)}, {s(S_S)}, 1
    s_cmp_lt_u32 {s(S_S)}, {NSEG}
    s_cbranch_scc1 {Litem}
    s_waitcnt vmcnt(0)
    ''')
    flush_flag()
    A('s_endpgm')

def attention(A, LG, Lfail, kv_loads, km_loads, flush_flag):
    SX, SM = V_ACC, V_ACC + 16
    for (st, fa, fn) in ((S_KVL, S_FKV, kv_loads), (S_KML, S_FKM, km_loads)):
        L = A.newlabel('AT')
        A(f's_cmp_lg_u32 {s(st)}, 0')
        A(f's_cbranch_scc1 {L}')
        poll_block(A, fa, '15', V_FS2, Lfail)
        fn()
        A.label(L)
    A('s_waitcnt vmcnt(0)')
    A.forget()
    A('s_nop 1')
    for ks in range(4):
        A(f'v_mfma_f32_32x32x16_bf16 {v(SX,16)}, {v(KX_+4*ks,4)}, {v(Q_+4*ks,4)}, {v(BI_,16) if ks == 0 else v(SX,16)}')
    for ks in range(4):
        A(f'v_mfma_f32_32x32x16_bf16 {v(SM,16)}, {v(KM_+4*ks,4)}, {v(Q_+4*ks,4)}, {"0" if ks == 0 else v(SM,16)}')
    A(f'v_swap_b32 {v(VM_+1)}, {v(VM_+2)}')
    for i in range(5):
        wt = LG.issue(f'ds_write_b128 {v(V_SXW)}, {v(SX+4*i,4)} offset:{i*1024}')
    LG.wait(wt)
    A('s_barrier')
    RB = [KX_, KX_ + 4, KX_ + 8, KX_ + 12, KM_]
    tk = [LG.issue(f'ds_read_b128 {v(RB[i],4)}, {v(V_SXR)} offset:{i*1024}') for i in range(5)]
    for i in range(5):
        LG.wait(tk[i])
        A(f'v_pk_add_f32 {v(SX+4*i,2)}, {v(SX+4*i,2)}, {v(RB[i],2)}')
        A(f'v_pk_add_f32 {v(SX+4*i+2,2)}, {v(SX+4*i+2,2)}, {v(RB[i]+2,2)}')
    mx, m2 = V_U, V_U + 2
    A(f'v_max3_f32 {v(mx)}, {v(SX)}, {v(SX+1)}, {v(SX+2)}')
    A(f'v_max3_f32 {v(m2)}, {v(SX+3)}, {v(SX+4)}, {v(SX+5)}')
    for i in range(6, 18, 4):
        A(f'v_max3_f32 {v(mx)}, {v(mx)}, {v(SX+i)}, {v(SX+i+1)}')
        A(f'v_max3_f32 {v(m2)}, {v(m2)}, {v(SX+i+2)}, {v(SX+i+3)}')
    A(f'v_max3_f32 {v(mx)}, {v(mx)}, {v(SX+18)}, {v(SX+19)}')
    A(f'v_max_f32 {v(mx)}, {v(mx)}, {v(m2)}')
    A(f'v_mov_b32 {v(m2)}, {v(mx)}')
    A(f'v_permlane32_swap_b32 {v(mx)}, {v(m2)}')
    A(f'v_max_f32 {v(mx)}, {v(mx)}, {v(m2)}')
    A(f'v_mul_f32 {v(mx)}, {s(S_SC)}, {v(mx)}')
    for i in range(0, 20, 2):
        A(f'v_pk_fma_f32 {v(SX+i,2)}, {v(SX+i,2)}, {s(S_SC,2)}, {v(mx,2)} op_sel_hi:[1,1,0] neg_lo:[0,0,1] neg_hi:[0,0,1]')
    for i in range(20):
        A(f'v_exp_f32 {v(SX+i)}, {v(SX+i)}')
    PT = KX_
    for i in range(10):
        A(f'v_cvt_pk_bf16_f32 {v(PT+i)}, {v(SX+2*i)}, {v(SX+2*i+1)}')
    l = V_U
    A(f'v_pk_add_f32 {v(l,2)}, {v(SX,2)}, {v(SX+2,2)}')
    A(f'v_pk_add_f32 {v(l+2,2)}, {v(SX+4,2)}, {v(SX+6,2)}')
    for i in range(8, 20, 4):
        A(f'v_pk_add_f32 {v(l,2)}, {v(l,2)}, {v(SX+i,2)}')
        A(f'v_pk_add_f32 {v(l+2,2)}, {v(l+2,2)}, {v(SX+i+2,2)}')
    A(f'v_pk_add_f32 {v(l,2)}, {v(l,2)}, {v(l+2,2)}')
    O = [V_ACC, V_ACC + 16]
    for pi in range(2):
        A(f'v_mfma_f32_32x32x16_bf16 {v(O[pi],16)}, {v(VX_+8*pi,4)}, {v(PT,4)}, 0')
        if pi == 0:
            A(f'v_add_f32 {v(l+2)}, {v(l)}, {v(l+1)}')
            A(f'v_add_f32 {v(l)}, {v(l)}, {v(l+1)}')
        A(f'v_mfma_f32_32x32x16_bf16 {v(O[pi],16)}, {v(VX_+8*pi+4,4)}, {v(PT+4,4)}, {v(O[pi],16)}')
        if pi == 0:
            A(f'v_permlane32_swap_b32 {v(l)}, {v(l+2)}')
            A(f'v_add_f32 {v(l)}, {v(l)}, {v(l+2)}')
            A(f'v_rcp_f32 {v(l)}, {v(l)}')
        A(f'v_mfma_f32_32x32x8_bf16 {v(O[pi],16)}, {v(VM_+2*pi,2)}, {v(PT+8,2)}, {v(O[pi],16)}')
    for pi in range(2):
        for i in range(0, 16, 2):
            A(f'v_pk_mul_f32 {v(O[pi]+i,2)}, {v(O[pi]+i,2)}, {v(l,2)} op_sel_hi:[1,0]')
    for i in range(16):
        A(f'v_cvt_pk_bf16_f32 {v(Q_+i)}, {v(O[0]+i)}, {v(O[1]+i)}')
```

```python
from asmgen import *
from layout import *
import t1

L_RED = 0
L_W = 32768

V_L16, V_OA, V_WL, V_RW, V_RR, V_ONE, V_FS = 1, 2, 3, 4, 5, 6, 7
V_L4 = t1.V_L4
V_RES = 12
V_LW = 16
V_B = 32
V_ACC = 96
NB = 16

S_I, S_W, S_S, S_L = 8, 9, 10, 11
S_IN, S_FIN, S_FM = 12, 13, 14
S_OUT, S_FOUT, S_RES = 16, 17, 18
S_T0, S_T1, S_T2 = 21, 22, 23
S_P = 26
S_NBLK = 27
S_OSRD = 40

def gen_t2(A, kind, Lfail):
    srd = 's[4:7]'
    if kind == 'O':
        nk, KK, WOFF, nrep = 64, 256, WO_OFF, 2
        lds_k = [k for k in range(nk) if k % 4 == 3]
        in_sz = OF_SZ
    else:
        nk, KK, WOFF, nrep = 27, 108, W2_OFF, 1
        lds_k = []
        in_sz = HF_SZ
    reg_k = [k for k in range(nk) if k not in lds_k]
    def wreg(pi, k):
        i = (reg_k.index(k) * 2 + pi) * 4
        return 256 + i if i < 256 else 128 + (i - 256)
    A(f'''
    s_load_dwordx2 s[{S_OSRD}:{S_OSRD+1}], s[0:1], 80
    v_lshrrev_b32 v2, 6, v0
    v_and_b32 v0, 63, v0
    v_readfirstlane_b32 {s(S_W)}, v2
    v_lshlrev_b32 {v(V_L16)}, 4, v0
    v_lshlrev_b32 {v(V_L4)}, 2, v0
    v_mov_b32 {v(V_ONE)}, 1
    s_lshl_b32 {s(S_T0)}, {s(S_W)}, 15
    s_add_u32 {s(S_T0)}, {s(S_T0)}, {L_W}
    v_add_u32 {v(V_WL)}, {s(S_T0)}, {v(V_L16)}
    s_lshl_b32 {s(S_T0)}, {s(S_W)}, 13
    v_add_u32 {v(V_RW)}, {s(S_T0)}, {v(V_L16)}
    s_lshl_b32 {s(S_T0)}, {s(S_W)}, 10
    v_add_u32 {v(V_RR)}, {s(S_T0)}, {v(V_L16)}
    ''')
    if kind == 'O':
        A(f'''
        s_and_b32 {s(S_S)}, {s(S_I)}, 1
        s_lshr_b32 {s(S_NBLK)}, {s(S_I)}, 1
        s_mul_i32 {s(S_IN)}, {s(S_L)}, {NSEG*OF_SZ}
        s_add_u32 {s(S_IN)}, {s(S_IN)}, {OF_OFF}
        s_mul_i32 {s(S_FIN)}, {s(S_L)}, {NSEG*512}
        s_add_u32 {s(S_FOUT)}, {s(S_FIN)}, {FL('X1',0,0)}
        s_add_u32 {s(S_FIN)}, {s(S_FIN)}, {FL('O',0,0)}
        s_lshl_b32 {s(S_T0)}, {s(S_W)}, 6
        s_add_u32 {s(S_FIN)}, {s(S_FIN)}, {s(S_T0)}
        s_mov_b32 {s(S_FM)}, 0xffff
        s_mov_b32 {s(S_FM+1)}, 0
        s_lshl_b32 {s(S_T2)}, {s(S_L)}, 1
        ''')
    else:
        A(f'''
        s_mov_b32 {s(S_S)}, 0
        s_mov_b32 {s(S_NBLK)}, {s(S_I)}
        s_mul_i32 {s(S_IN)}, {s(S_L)}, {NSEG*HF_SZ}
        s_add_u32 {s(S_IN)}, {s(S_IN)}, {HF_OFF}
        s_mul_i32 {s(S_FIN)}, {s(S_L)}, {NSEG*512}
        s_add_u32 {s(S_FOUT)}, {s(S_FIN)}, {FL('X2',0,0)}
        s_add_u32 {s(S_FIN)}, {s(S_FIN)}, {FL('HH',0,0)}
        s_mov_b32 {s(S_FM)}, 0x7ffffff
        s_mov_b32 {s(S_FM+1)}, 0
        s_lshl_b32 {s(S_T2)}, {s(S_L)}, 1
        s_add_u32 {s(S_T2)}, {s(S_T2)}, 1
        ''')
    A(f'''
    s_mul_i32 {s(S_T0)}, {s(S_W)}, {nk*1024}
    s_add_u32 {s(S_IN)}, {s(S_IN)}, {s(S_T0)}
    s_mul_i32 {s(S_T0)}, {s(S_S)}, {in_sz}
    s_add_u32 {s(S_IN)}, {s(S_IN)}, {s(S_T0)}
    s_lshl_b32 {s(S_T0)}, {s(S_S)}, 9
    s_add_u32 {s(S_FIN)}, {s(S_FIN)}, {s(S_T0)}
    s_add_u32 {s(S_FOUT)}, {s(S_FOUT)}, {s(S_T0)}
    s_lshl_b32 {s(S_T1)}, {s(S_NBLK)}, 2
    s_add_u32 {s(S_T1)}, {s(S_T1)}, {s(S_W)}
    s_lshl_b32 {s(S_T0)}, {s(S_T1)}, 2
    s_add_u32 {s(S_FOUT)}, {s(S_FOUT)}, {s(S_T0)}
    s_mul_i32 {s(S_RES)}, {s(S_T2)}, {NSEG*XF_SZ}
    s_mul_i32 {s(S_T0)}, {s(S_S)}, {XF_SZ}
    s_add_u32 {s(S_RES)}, {s(S_RES)}, {s(S_T0)}
    s_lshl_b32 {s(S_T0)}, {s(S_T1)}, 10
    s_add_u32 {s(S_RES)}, {s(S_RES)}, {s(S_T0)}
    s_add_u32 {s(S_RES)}, {s(S_RES)}, {XF_OFF}
    s_add_u32 {s(S_OUT)}, {s(S_RES)}, {NSEG*XF_SZ}
    v_mov_b32 {v(V_OA)}, {v(V_L16)}
    s_mov_b32 {s(S_OSRD+2)}, {2048*640*2}
    s_mov_b32 {s(S_OSRD+3)}, 0x00020000
    s_waitcnt lgkmcnt(0)
    ''')
    Lws = A.newlabel('T2_WS'); Lgo = A.newlabel('T2_G')
    A(f's_cmp_lg_u32 {s(S_T2)}, 3')
    A(f's_cbranch_scc1 {Lws}')
    A(f'''
    v_and_b32 {v(V_RES)}, 31, v0
    v_mul_u32_u24 {v(V_RES)}, 1280, {v(V_RES)}
    v_lshrrev_b32 {v(V_RES+1)}, 5, v0
    v_lshl_add_u32 {v(V_OA)}, {v(V_RES+1)}, 4, {v(V_RES)}
    s_lshl_b32 {s(S_OUT)}, {s(S_T1)}, 5
    s_branch {Lgo}
    ''')
    A.label(Lws)
    A(f's_mov_b32 {s(S_OSRD)}, s4')
    A(f's_mov_b32 {s(S_OSRD+1)}, s5')
    A(f's_mov_b32 {s(S_OSRD+2)}, s6')
    A.label(Lgo)
    VM = Cnt(A, 'vmcnt', 63)
    A(f'''
    s_mul_i32 {s(S_T0)}, {s(S_NBLK)}, {2*KK*1024}
    s_mul_i32 {s(S_T1)}, {s(S_W)}, {nk*1024}
    s_add_u32 {s(S_T0)}, {s(S_T0)}, {s(S_T1)}
    s_add_u32 {s(S_P)}, {s(S_T0)}, {WOFF}
    s_lshl_b32 {s(S_T2)}, {s(S_W)}, 15
    s_add_u32 {s(S_T2)}, {s(S_T2)}, {L_W}
    ''')
    for pi in range(2):
        for k in range(nk):
            if k % 4 == 0:
                A(f's_add_u32 {s(S_T0)}, {s(S_P)}, {(pi*KK + k)*1024}')
            if k in lds_k:
                A(f's_add_u32 m0, {s(S_T2)}, {(lds_k.index(k)*2+pi)*1024 - (k%4)*1024 + 4096 - 4096}')
                VM.issue(f'buffer_load_dwordx4 {v(V_L16)}, {srd}, {s(S_T0)} offen offset:{(k%4)*1024} lds')
            else:
                VM.issue(f'buffer_load_dwordx4 {r(wreg(pi,k),4)}, {v(V_L16)}, {srd}, {s(S_T0)} offen offset:{(k%4)*1024}')
            VM.wait(VM.issued - 40)
    VM.drain()

    Litem = A.newlabel('T2_ITEM')
    A.label(Litem)
    A.forget()
    LG = Cnt(A, 'lgkmcnt', 15)
    t1.poll_block(A, S_FIN, s(S_FM, 2), V_FS, Lfail)
    VM.reset()
    btok = {}
    def bload(k):
        if k % 4 == 0:
            A(f's_add_u32 {s(S_P)}, {s(S_IN)}, {k*1024}')
        btok[k] = VM.issue(f'buffer_load_dwordx4 {v(V_B+4*(k%NB),4)}, {v(V_L16)}, {srd}, {s(S_P)} offen offset:{(k%4)*1024} sc1')
    ltok = {}
    def lread(k):
        j = lds_k.index(k)
        for pi in range(2):
            ltok[(pi, k)] = LG.issue(f'ds_read_b128 {v(V_LW+4*((2*j+pi)%4),4)}, {v(V_WL)} offset:{(2*j+pi)*1024}')
    for k in range(NB):
        bload(k)
    for k in lds_k[:2]:
        lread(k)
    rtok = None
    for k in range(nk):
        VM.wait(btok[k])
        for pi in range(2):
            acc = v(V_ACC + 16 * pi, 16)
            if k in lds_k:
                LG.wait(ltok[(pi, k)])
                w = v(V_LW + 4 * ((2 * lds_k.index(k) + pi) % 4), 4)
            else:
                w = r(wreg(pi, k), 4)
            A(f'v_mfma_f32_32x32x16_bf16 {acc}, {w}, {v(V_B+4*(k%NB),4)}, {"0" if k == 0 else acc}')
        if k + NB < nk:
            bload(k + NB)
        elif rtok is None:
            rtok = VM.issue(f'buffer_load_dwordx4 {v(V_RES,4)}, {v(V_L16)}, {srd}, {s(S_RES)} offen sc1')
        if k in lds_k and lds_k.index(k) + 2 < len(lds_k):
            lread(lds_k[lds_k.index(k) + 2])
    for i in range(8):
        wt = LG.issue(f'ds_write_b128 {v(V_RW)}, {v(V_ACC+4*i,4)} offset:{L_RED+i*1024}')
    LG.wait(wt)
    A('s_barrier')
    tk = {}
    for w in range(4):
        for t in range(2):
            tk[(w, t)] = LG.issue(f'ds_read_b128 {v(V_B+(w*2+t)*4,4)}, {v(V_RR)} offset:{L_RED+w*8192+t*4096}')
    VM.wait(rtok)
    U = V_B + 32
    for i in range(4):
        A(f'v_lshlrev_b32 {v(U+2*i)}, 16, {v(V_RES+i)}')
        A(f'v_and_b32 {v(U+2*i+1)}, 0xffff0000, {v(V_RES+i)}')
    for w in range(1, 4):
        LG.wait(tk[(w, 1)])
        for i in range(0, 8, 2):
            A(f'v_pk_add_f32 {v(V_B+i,2)}, {v(V_B+i,2)}, {v(V_B+8*w+i,2)}')
    A('s_barrier')
    for i in range(4):
        A(f'v_cvt_pk_bf16_f32 {v(V_RES+i)}, {v(V_B+i)}, {v(V_B+4+i)}')
    X = V_B + 8
    for i in range(4):
        A(f'v_lshlrev_b32 {v(X+2*i)}, 16, {v(V_RES+i)}')
        A(f'v_and_b32 {v(X+2*i+1)}, 0xffff0000, {v(V_RES+i)}')
    for i in range(4):
        A(f'v_pk_add_f32 {v(X+2*i,2)}, {v(X+2*i,2)}, {v(U+2*i,2)}')
    for i in range(4):
        A(f'v_cvt_pk_bf16_f32 {v(V_RES+i)}, {v(X+2*i)}, {v(X+2*i+1)}')
    A(f'buffer_store_dwordx4 {v(V_RES,4)}, {v(V_OA)}, s[{S_OSRD}:{S_OSRD+3}], {s(S_OUT)} offen sc1')
    A('s_waitcnt vmcnt(0)')
    A('s_mov_b64 exec, 1')
    A(f'buffer_store_dword {v(V_ONE)}, off, {srd}, {s(S_FOUT)} sc1')
    A('s_mov_b64 exec, -1')
    A(f'''
    s_add_u32 {s(S_IN)}, {s(S_IN)}, {nrep*in_sz}
    s_add_u32 {s(S_FIN)}, {s(S_FIN)}, {nrep*512}
    s_add_u32 {s(S_FOUT)}, {s(S_FOUT)}, {nrep*512}
    s_add_u32 {s(S_RES)}, {s(S_RES)}, {nrep*XF_SZ}
    s_add_u32 {s(S_OUT)}, {s(S_OUT)}, {nrep*XF_SZ}
    s_add_u32 {s(S_S)}, {s(S_S)}, {nrep}
    s_cmp_lt_u32 {s(S_S)}, {NSEG}
    s_cbranch_scc1 {Litem}
    s_endpgm
    ''')
```

```python
import sys
from asmgen import *
from layout import *
import prep, chain, t1, t2

HDR = open('interleave_layers__memory_aug_recurrent_mem_tr__dense_activation_relu__prompt.s.ref').read().split('; Override launch')[0]

ROLES = [('KV', 32), ('QA', 16), ('O', 20), ('F1', 7), ('F2', 10)]

def role_code(A, role, Lfail, ts=False, opt=()):
    if role == 'CH':
        chain.gen_chain(A, Lfail, ts=ts, opt=opt)
    elif role in ('KV', 'QA', 'F1'):
        t1.gen_t1(A, role, Lfail)
    else:
        t2.gen_t2(A, role, Lfail)

def seq_build(ts=False, opt=()):
    A = Asm()
    launches = []
    body = Asm()
    launches.append(prep.gen_prep(body))
    for role in ['KV', 'CH', 'QA', 'O', 'F1', 'F2']:
        n = dict(ROLES).get(role, 32)
        for L in range(2):
            name = f'{role.lower()}{L}_kernel'
            body.raw(kernel_header(name))
            body.forget()
            body('s_load_dwordx2 s[4:5], s[0:1], 96')
            if role == 'CH':
                body(f'''
                s_and_b32 s9, s2, 7
                s_lshr_b32 s8, s2, 3
                s_cmp_ge_u32 s2, 256
                s_cbranch_scc1 X_{name}
                s_cmp_lg_u32 s9, 0
                s_cbranch_scc1 X_{name}
                ''')
            else:
                body(f'''
                s_mov_b32 s8, s2
                s_cmp_ge_u32 s2, {n}
                s_cbranch_scc1 X_{name}
                ''')
            body(f'''
            s_mov_b32 s11, {L}
            s_mov_b32 s6, 0x10000000
            s_mov_b32 s7, 0x00020000
            s_waitcnt lgkmcnt(0)
            s_branch R_{role}
            X_{name}:
            s_endpgm
            ''')
            body.raw(kernel_desc(name))
        body.label(f'R_{role}')
        body.forget()
        role_code(body, role, f'F_{role}', ts=ts, opt=opt)
        body.label(f'F_{role}')
        body('s_endpgm')
    for L in range(2):
        for role in ['KV', 'CH', 'QA', 'O', 'F1', 'F2']:
            n = 256 if role == 'CH' else dict(ROLES)[role]
            launches.append(f'; @launch kernel={role.lower()}{L}_kernel grid=({n},1,1) block=(256,1,1) lds=163840')
    return HDR + '\n'.join(launches) + '\n.amdgcn_target "amdgcn-amd-amdhsa--gfx950"\n.text\n' + body.text()

def mega_build(ts=False, opt=()):
    body = Asm()
    launches = [prep.gen_prep(body)]
    name = 'mega_kernel'
    body.raw(kernel_header(name))
    body.forget()
    body(f'''
    s_load_dwordx2 s[4:5], s[0:1], 96
    s_load_dwordx2 s[12:13], s[0:1], 88
    s_cmp_ge_u32 s2, 256
    s_cbranch_scc1 M_EXIT
    s_getreg_b32 s9, hwreg(HW_REG_XCC_ID)
    s_and_b32 s9, s9, 7
    s_mov_b32 s6, 0x10000000
    s_mov_b32 s7, 0x00020000
    s_mov_b32 s14, 256
    s_mov_b32 s15, 0x00020000
    s_lshl_b32 s10, s9, 2
    v_mov_b32 v1, 1
    v_mov_b32 v2, 0
    v_cmp_eq_u32 vcc, 0, v0
    s_waitcnt lgkmcnt(0)
    s_and_saveexec_b64 s[16:17], vcc
    s_cbranch_execz M_NOAT
    buffer_atomic_add v1, off, s[12:15], s10 sc0
    s_waitcnt vmcnt(0)
    ds_write_b32 v2, v1
    s_waitcnt lgkmcnt(0)
    M_NOAT:
    s_mov_b64 exec, s[16:17]
    s_barrier
    ds_read_b32 v1, v2
    s_waitcnt lgkmcnt(0)
    v_readfirstlane_b32 s8, v1
    s_barrier
    s_cmp_ge_u32 s8, 32
    s_cbranch_scc1 M_EXIT
    s_lshr_b32 s11, s9, 2
    s_and_b32 s9, s9, 3
    s_cmp_eq_u32 s9, 0
    s_cbranch_scc1 R_CH
    s_cmp_eq_u32 s9, 1
    s_cbranch_scc1 R_KV
    s_cmp_eq_u32 s9, 2
    s_cbranch_scc0 M_X3
    s_cmp_lt_u32 s8, 16
    s_cbranch_scc1 R_QA
    s_sub_u32 s8, s8, 16
    s_cmp_lt_u32 s8, 7
    s_cbranch_scc1 R_F1
    s_endpgm
    M_X3:
    s_cmp_lt_u32 s8, 20
    s_cbranch_scc1 R_O
    s_sub_u32 s8, s8, 20
    s_cmp_lt_u32 s8, 10
    s_cbranch_scc1 R_F2
    M_EXIT:
    s_endpgm
    ''')
    for role in ['CH', 'KV', 'QA', 'O', 'F1', 'F2']:
        body.raw('.p2align 6')
        body.label(f'R_{role}')
        body.forget()
        role_code(body, role, f'F_{role}', ts=ts, opt=opt)
        body.label(f'F_{role}')
        body('s_endpgm')
    body.raw(kernel_desc(name))
    launches.append(f'; @launch kernel={name} grid=(256,1,1) block=(256,1,1) lds=163840')
    return HDR + '\n'.join(launches) + '\n.amdgcn_target "amdgcn-amd-amdhsa--gfx950"\n.text\n' + body.text()

if __name__ == '__main__':
    open('seq.s', 'w').write(seq_build())
    open('mega.s', 'w').write(mega_build())
    open('mega_ts.s', 'w').write(mega_build(ts=chain.BASE))
```
